```python
import torch

def _softmax(x, axis=-1):
    return torch.softmax(x, dim=axis)
def _gelu(x):
    return torch.nn.functional.gelu(x, approximate="tanh")
def _silu(x):
    return torch.nn.functional.silu(x)
def _sigmoid(x):
    return torch.sigmoid(x)
def _layernorm(x, axis=-1, eps=1e-5):
    m = x.mean(dim=axis, keepdim=True)
    v = x.var(dim=axis, keepdim=True, unbiased=False)
    return (x - m) / torch.sqrt(v + eps)
def _scatter_add(tgt, idx, src, axis=0):
    return tgt.clone().index_add_(axis, idx, src)
def _segment_sum(src, seg, n):
    out = torch.zeros((n,) + src.shape[1:], dtype=src.dtype)
    return out.index_add_(0, seg, src)
def _pad(x, pw):
    flat = tuple(v for pair in reversed(pw) for v in pair)
    return torch.nn.functional.pad(x, flat)

kernel_name = 'sequential_preLN__linear_attn_block__swiglu_ffn__prompt'

def setup_inputs():

    _w = (lambda a: (lambda t: t.to(torch.bfloat16) if t.is_floating_point() else t)(torch.as_tensor(a)))
    def _A_setup():
        B, S, D = 1, 2048, 512
        return {
            "x": _w((lambda *s: torch.randn(*s, dtype=torch.bfloat16) * 0.05)(B, S, D)),
            "wqkv": _w((lambda *s: torch.randn(*s, dtype=torch.bfloat16) * 0.05)(D, 3 * D)),
            "wo": _w((lambda *s: torch.randn(*s, dtype=torch.bfloat16) * 0.05)(D, D)),
        }
    _A_in = _A_setup()

    def _B_setup():
        B, S, D, F = 1, 2048, 512, 1376
        return {
            "x": _w((lambda *s: torch.randn(*s, dtype=torch.bfloat16) * 0.05)(B, S, D)),
            "w_gate": _w((lambda *s: torch.randn(*s, dtype=torch.bfloat16) * 0.05)(D, F)),
            "w_up": _w((lambda *s: torch.randn(*s, dtype=torch.bfloat16) * 0.05)(D, F)),
            "w_down": _w((lambda *s: torch.randn(*s, dtype=torch.bfloat16) * 0.05)(F, D)),
        }
    _B_in = _B_setup()

    return {
        "A_x": _A_in["x"],
        "A_wqkv": _A_in["wqkv"],
        "A_wo": _A_in["wo"],
        "B_x": _B_in["x"],
        "B_w_gate": _B_in["w_gate"],
        "B_w_up": _B_in["w_up"],
        "B_w_down": _B_in["w_down"],
    }

def reference(A_x, A_wqkv, A_wo, B_x, B_w_gate, B_w_up, B_w_down):
    def _A_ref(x, wqkv, wo):
        B, S, D = x.shape
        H = 32; Dh = D // H
        qkv = (lambda x, *d: x.permute(*d))((x @ wqkv).reshape(B, S, 3, H, Dh), 2, 0, 3, 1, 4)
        q, k, v = qkv[0], qkv[1], qkv[2]
        phi = lambda t: torch.where(t > 0, t + 1, torch.exp(t)) + 1e-6
        pq, pk = phi(q), phi(k)
        kv = torch.einsum("bhsd,bhse->bhde", pk, v)
        z = torch.einsum("bhsd->bhd", pk)
        num = torch.einsum("bhqd,bhde->bhqe", pq, kv)
        den = torch.einsum("bhqd,bhd->bhq", pq, z)[..., None] + 1e-6
        o = num / den
        return (lambda x, *d: x.permute(*d))(o, 0, 2, 1, 3).reshape(B, S, D) @ wo

    def _B_ref(x, w_gate, w_up, w_down):
        g = _silu(x @ w_gate)
        u = x @ w_up
        return (g * u) @ w_down

    x = A_x
    h = x + _A_ref(_layernorm(x, axis=-1), A_wqkv, A_wo)
    h2 = h + _B_ref(_layernorm(h, axis=-1), B_w_gate, B_w_up, B_w_down)
    return h2
```

```python
import re

REG_RE = re.compile(r'^(v|a|s)(?:(\d+)|\[(\d+):(\d+)\])$')


def regs_of(op):
    op = op.strip()
    if op.startswith('-'):
        op = op[1:]
    if op.startswith('abs(') and op.endswith(')'):
        op = op[4:-1]
    if op.startswith('|') and op.endswith('|'):
        op = op[1:-1]
    if op in ('vcc', 'exec', 'm0'):
        return [op]
    if op in ('vcc_lo', 'vcc_hi'):
        return ['vcc']
    m = REG_RE.match(op)
    if not m:
        return []
    if m.group(2) is not None:
        return [m.group(1) + m.group(2)]
    return [m.group(1) + str(i) for i in range(int(m.group(3)), int(m.group(4)) + 1)]


TRANS = ('v_exp_f32', 'v_log_f32', 'v_rcp_f32', 'v_rsq_f32', 'v_sqrt_f32', 'v_sin_f32', 'v_cos_f32')


class Ins:
    __slots__ = ('text', 'mn', 'ops', 'defs', 'uses', 'kind', 'tag', 'passes', 'ab', 'c', 'dpp', 'wide', 'lds')

    def __init__(self, text, tag=None):
        self.text = text
        self.tag = tag
        body = text.split(';')[0].strip()
        parts = body.split(None, 1)
        self.mn = parts[0]
        rest = parts[1] if len(parts) > 1 else ''
        raw = [o.strip() for o in rest.split(',')] if rest else []
        ops = []
        for i, o in enumerate(raw):
            ops.append(o.split()[0] if o else o)
        self.ops = ops
        mn = self.mn
        R = [regs_of(o) for o in ops]
        flat = lambda xs: [r for x in xs for r in x]
        self.defs, self.uses = [], []
        self.passes = 0
        self.ab, self.c = [], []
        self.dpp = ('_dpp' in mn) or ('quad_perm' in body) or ('row_' in body)
        self.wide = False
        self.lds = False
        if mn.startswith('v_mfma'):
            self.kind = 'mfma'
            self.defs = R[0]
            self.ab = R[1] + R[2]
            self.c = R[3]
            self.uses = self.ab + self.c
            self.passes = 8 if '32x32' in mn else 4
        elif mn.startswith('v_cmp'):
            self.kind = 'valu'
            self.defs = R[0]
            self.uses = flat(R[1:])
        elif mn.startswith('v_permlane'):
            self.kind = 'valu'
            self.defs = R[0] + R[1]
            self.uses = R[0] + R[1]
        elif mn.startswith('v_'):
            self.kind = 'valu'
            self.defs = R[0]
            self.uses = flat(R[1:])
            if mn.startswith(('v_fmac', 'v_dot2c', 'v_writelane')) or self.dpp:
                self.uses = self.uses + R[0]
            if mn.startswith(('v_add_co', 'v_addc_co', 'v_sub_co')):
                self.defs = R[0] + R[1]
        elif mn.startswith('ds_read'):
            self.kind = 'ds'
            self.defs = R[0]
            self.uses = flat(R[1:])
        elif mn.startswith('ds_'):
            self.kind = 'ds'
            self.uses = flat(R)
        elif mn.startswith('buffer_load'):
            self.kind = 'vm'
            if re.search(r'\blds\b', body):
                self.lds = True
                self.uses = flat(R) + ['m0']
            else:
                self.defs = R[0]
                self.uses = flat(R[1:])
        elif mn.startswith('buffer_'):
            self.kind = 'vm'
            self.uses = flat(R)
            self.wide = mn.endswith(('x3', 'x4'))
        elif mn.startswith(('s_load', 's_memtime', 's_memrealtime')):
            self.kind = 'smem'
            self.defs = R[0]
            self.uses = flat(R[1:])
        elif mn.startswith(('s_cmp', 's_bitcmp')):
            self.kind = 'salu'
            self.uses = flat(R)
        elif mn.startswith(('s_cbranch', 's_branch')):
            self.kind = 'branch'
        elif mn in ('s_waitcnt', 's_barrier', 's_nop', 's_endpgm', 's_sleep', 's_setprio'):
            self.kind = 'ctl'
        elif mn.startswith('s_'):
            self.kind = 'salu'
            self.defs = R[0]
            self.uses = flat(R[1:])
            if 'saveexec' in mn:
                self.defs = self.defs + ['exec']
        else:
            raise ValueError('unknown instruction: ' + text)


def I(text, tag=None):
    out = []
    for line in text.split('\n'):
        line = line.strip()
        if not line:
            continue
        if line.endswith(':') or line.startswith('.'):
            out.append(('raw', line))
        else:
            out.append(Ins(line, tag))
    return out


def waitvm(tag):
    return [('waitvm', tag)]


def waitlg(tag):
    return [('waitlg', tag)]


def cond_begin():
    return [('cond_begin',)]


def cond_end():
    return [('cond_end',)]


def interleave(main, side, start=0, every=1, per=1):
    out = []
    side = list(side)
    nxt = float(start)
    for i, g in enumerate(main):
        out += g
        while side and i >= nxt - 1e-9:
            for _ in range(per):
                if side:
                    out += side.pop(0)
            nxt += every
    for g in side:
        out += g
    return out


class Q:
    def __init__(self, maxn):
        self.q = []
        self.maxn = maxn

    def copy(self):
        n = Q(self.maxn)
        n.q = list(self.q)
        return n

    def need(self, idx, cond):
        n = sum(1 for e in self.q[idx + 1:] if e['cond'] is None or e['cond'] is cond)
        return min(n, self.maxn)

    def retire_to(self, n, cond):
        kept = 0
        cut = len(self.q)
        while cut > 0:
            e = self.q[cut - 1]
            sure = e['cond'] is None or e['cond'] is cond
            if n == 0:
                break
            if sure and kept == n:
                break
            if sure:
                kept += 1
            cut -= 1
        self.q = self.q[cut:]


def resolve_waits(items, verbose=False):
    out = []
    vm, lg = Q(63), Q(15)
    smem = set()
    cond = None
    snap = None
    nauto = 0

    def emit_wait(nv, nl):
        s = 's_waitcnt'
        if nv is not None:
            s += f' vmcnt({nv})'
            vm.retire_to(nv, cond)
        if nl is not None:
            s += f' lgkmcnt({nl})'
            lg.retire_to(nl, cond)
            if nl == 0:
                smem.clear()
        out.append(Ins(s))

    for it in items:
        if isinstance(it, tuple):
            if it[0] == 'raw':
                out.append(it)
            elif it[0] == 'cond_begin':
                assert cond is None
                cond = object()
                snap = (vm.copy(), lg.copy(), set(smem))
            elif it[0] == 'cond_end':
                for cur, old in ((vm, snap[0]), (lg, snap[1])):
                    cur.q = old.q + [e for e in cur.q if e['cond'] is cond]
                smem |= snap[2]
                cond = None
            elif it[0] in ('waitvm', 'waitlg'):
                q = vm if it[0] == 'waitvm' else lg
                idxs = [i for i, e in enumerate(q.q) if e['tag'] == it[1]]
                if idxs:
                    n = q.need(idxs[-1], cond)
                    emit_wait(n if q is vm else None, n if q is lg else None)
            continue
        ins = it
        if ins.mn == 's_waitcnt':
            m = re.search(r'vmcnt\((\d+)\)', ins.text)
            if m:
                vm.retire_to(int(m.group(1)), cond)
            m = re.search(r'lgkmcnt\((\d+)\)', ins.text)
            if m:
                lg.retire_to(int(m.group(1)), cond)
                if int(m.group(1)) == 0:
                    smem.clear()
            out.append(ins)
            continue
        touched = set(ins.uses) | set(ins.defs)
        nv = nl = None
        for q, which in ((vm, 0), (lg, 1)):
            t = touched
            if (which == 0 and ins.kind == 'vm') or (which == 1 and ins.kind == 'ds'):
                t = set(ins.uses)
            idxs = [i for i, e in enumerate(q.q) if e['regs'] & t]
            if idxs:
                n = q.need(idxs[-1], cond)
                if which == 0:
                    nv = n
                else:
                    nl = n
        if smem & touched and not (ins.kind == 'smem' and ins.mn.startswith('s_mem')):
            nl = 0
        if nv is not None or nl is not None:
            nauto += 1
            emit_wait(nv, nl)
        out.append(ins)
        if ins.kind == 'vm':
            vm.q.append(dict(regs=set(ins.defs), tag=ins.tag, cond=cond))
        elif ins.kind == 'ds':
            lg.q.append(dict(regs=set(ins.defs), tag=ins.tag, cond=cond))
        elif ins.kind == 'smem':
            smem |= set(ins.defs)
    if verbose:
        print('auto waits:', nauto)
    return out


def hazard_need(hist, ins):
    need = 0
    u, d = set(ins.uses), set(ins.defs)
    for p, age in hist:
        req = 0
        pd = set(p.defs)
        if p.kind == 'valu':
            vd = {r for r in pd if r[0] in 'va' and r != 'vcc'}
            sd = pd - vd
            isdot = p.mn.startswith('v_dot')
            if ins.kind == 'mfma' and vd & u:
                req = max(req, 3 if isdot else 2)
            if ins.kind == 'valu':
                if p.mn.startswith(TRANS) and vd & u:
                    req = max(req, 1)
                if (ins.mn.startswith('v_permlane') or ins.dpp) and vd & u:
                    req = max(req, 2)
                if ins.mn.startswith(('v_readlane', 'v_readfirstlane')) and vd & u:
                    req = max(req, 1)
                if sd & u:
                    req = max(req, 4 if ins.mn.startswith(('v_readlane', 'v_writelane')) else 2)
                if isdot and vd & (u | d):
                    if ins.mn == p.mn:
                        srcs = set(regs_of(ins.ops[1])) | set(regs_of(ins.ops[2]))
                        if vd & srcs:
                            req = max(req, 3)
                    else:
                        req = max(req, 3)
            if ins.kind in ('vm', 'ds') and isdot and vd & (u | d):
                req = max(req, 3)
            if ins.kind == 'vm' and sd & u:
                req = max(req, 5)
            if ins.kind in ('salu', 'smem') and sd & u:
                req = max(req, 1)
            if ins.kind == 'branch' and 'vcc' in ins.mn and 'vcc' in sd:
                req = max(req, 1)
        elif p.kind == 'mfma':
            full = 12 if p.passes == 8 else 8
            if ins.kind == 'mfma':
                if pd & set(ins.ab):
                    req = max(req, full)
                if pd & set(ins.c):
                    if not (p.defs == ins.c and p.passes == ins.passes):
                        req = max(req, full - 2)
                elif pd & d and p.passes != ins.passes:
                    req = max(req, full)
            elif ins.kind in ('valu', 'vm', 'ds'):
                if pd & (u | d):
                    req = max(req, full)
                if ins.kind == 'valu' and set(p.c) & d:
                    req = max(req, 7 if p.passes == 8 else 3)
        elif p.kind == 'salu':
            if 'm0' in pd and ins.lds:
                req = max(req, 1)
        elif p.kind == 'vm' and p.wide:
            data = set(regs_of(p.ops[0]))
            if data & d:
                req = max(req, 2)
        need = max(need, req - age)
    return need


def pad_hazards(items, verbose=False):
    H = 14
    saved = {}
    total = 0
    for rnd in range(2):
        out = []
        hist = []
        total = 0
        for it in items:
            if isinstance(it, tuple):
                line = it[1]
                if line.endswith(':'):
                    for h in saved.get(line[:-1], []):
                        hist = hist + h
                out.append(it)
                continue
            n = hazard_need(hist, it)
            if n > 0:
                total += n
                out.append(Ins(f's_nop {n - 1}'))
                hist = [(p, a + n) for p, a in hist if a + n < H]
            out.append(it)
            step = 1
            if it.mn == 's_nop':
                step = int(it.ops[0]) + 1
            hist = [(p, a + step) for p, a in hist if a + step < H]
            if it.kind in ('valu', 'mfma', 'salu', 'vm'):
                hist.append((it, 0))
            if it.kind == 'branch':
                saved.setdefault(it.ops[0], []).append(list(hist))
                if it.mn == 's_branch':
                    hist = []
            if it.mn == 's_endpgm':
                hist = []
    if verbose:
        print('hazard nops:', total)
    return out


def render(items):
    lines = []
    for it in items:
        if isinstance(it, tuple):
            lines.append(it[1])
        else:
            lines.append('    ' + it.text)
    return '\n'.join(lines)
```

```python
import sys, struct
sys.path.insert(0, 'exp')
from asmlib import *

NAME = 'sequential_preLN__linear_attn_block__swiglu_ffn__prompt_kernel'


def f2u(x):
    return struct.unpack('<I', struct.pack('<f', x))[0]


LOG2E = 1.4426950408889634

EPOCH = 0
F_P0 = 0x1000
F_X = 0x2000
STATS = 0x20000
KVG = 0xA0000
KVP = 0x100000
WT_O = 0x220000
WT_D = 0x2A0000
WT_GU = 0x400000
OBUF = 0x700000
HBUF = 0x900000
ACT = 0xB00000
PROF = 0x1100000
WS_BYTES = 0x2000000
OOB = 0x40000000
SLOT = 1152

sX, sWQ, sGU, sOD, sOUT, sWS = 24, 28, 32, 36, 40, 44
sNONCE, sW, sG, sJ, sROT, sTMO = 48, 49, 50, 51, 52, 53
sT0, sT1, sT2, sT3 = 54, 55, 56, 57
sM0W = 58
sM0W2 = 59
sFLAG = 60
sFLINE = 61
sKG, sCG = 62, 63
TA, TB, TC = 64, 4, 12
STAMP0 = 72

vL16 = 1
vA0, vA1, vA2, vA3, vA4, vA5, vA6, vA7 = 2, 3, 4, 5, 6, 7, 8, 9
vLANE = 10
vFL = 11
vKVZ = 12
vTMP = 13
vTMP2 = 14
vNEG = 15
HACC = 16
ACC0, ACC1 = 32, 48
BR = 64
EXT = 96
BEXT = 108
vC1, vQ = 116, 118
OUTR = 120
T3 = 128
ONES = 120
EPS4 = 124

L_XN = 0
L_P0GU = 0
L_P0OD = 12288
L_O = 65536
L_H = 0
L_ST = 131072
WSLOT = {('k', 0): 65536, ('k', 1): 81920, ('k', 2): 98304, ('k', 3): 114688,
         ('v', 0): 131072, ('v', 1): 147456, ('v', 2): 0, ('v', 3): 65536,
         ('q', 0): 16384, ('q', 1): 81920, ('q', 2): 32768, ('q', 3): 98304}
WOFF = {'q': 0, 'k': 1024, 'v': 2048}


def vr(b, n):
    return f'v[{b}:{b + n - 1}]'


def ar(b, n):
    return f'a[{b}:{b + n - 1}]'


def sr(b, n=4):
    return f's[{b}:{b + n - 1}]'


class Gen:
    def __init__(self, prof=False, opt=None):
        self.items = []
        self.prof = prof
        self.nstamp = 0
        self.stamp_names = []
        self.nlabel = 0
        self.opt = opt or {}

    def a(self, x, tag=None):
        if isinstance(x, str):
            self.items += I(x, tag)
        else:
            self.items += x

    def label(self, p='L'):
        self.nlabel += 1
        return f'{p}_{self.nlabel}'

    def stamp(self, name):
        if not self.prof:
            return []
        r = STAMP0 + 2 * self.nstamp
        assert r + 1 <= 101, 'too many stamps'
        self.nstamp += 1
        self.stamp_names.append(name)
        return I(f's_memtime s[{r}:{r + 1}]')

    def srd(self, d, b, n):
        return f's_mov_b32 s{d}, s{b}\ns_mov_b32 s{d + 1}, s{b + 1}\ns_mov_b32 s{d + 2}, {n}\ns_mov_b32 s{d + 3}, 0x20000'

    def timeout(self):
        return f's_sub_u32 s{sTMO}, s{sTMO}, 1\ns_cbranch_scc1 L_end'

    def flag_set(self, kind):
        return I(f's_add_u32 s{sT0}, s{sFLAG}, {kind * 16384}\nv_mov_b32 v{vTMP}, s{sNONCE}\nv_mov_b32 v{vTMP2}, 0\n'
                 f's_mov_b64 exec, 1\nbuffer_store_dword v{vTMP}, v{vTMP2}, {sr(sWS)}, s{sT0} offen sc1\ns_mov_b64 exec, -1')

    def flag_load(self, kind, reg):
        return I(f's_add_u32 s{sT0}, s{sFLINE}, {kind * 16384}\nbuffer_load_dword v{reg}, v{vFL}, {sr(sWS)}, s{sT0} offen sc1')

    def flag_check(self, kind, reg):
        ok, again = self.label('L_ok'), self.label('L_again')
        it = I(f'v_cmp_ne_u32 vcc, s{sNONCE}, v{reg}\ns_cbranch_vccz {ok}')
        it += cond_begin()
        it += I(f'{again}:') + self.flag_load(kind, reg) + I(self.timeout())
        it += I(f's_waitcnt vmcnt(0)\nv_cmp_ne_u32 vcc, s{sNONCE}, v{reg}\ns_cbranch_vccnz {again}')
        it += cond_end()
        it += I(f'{ok}:')
        return it

    def prologue(self):
        a = self.a
        if self.prof:
            a('s_memrealtime s[20:21]\ns_waitcnt lgkmcnt(0)\ns_mov_b32 s3, s20')
        a(self.stamp('start'))
        a('s_cmp_ge_u32 s2, 256\ns_cbranch_scc1 L_end')
        a('s_load_dwordx16 s[4:19], s[0:1], 0\ns_load_dwordx4 s[20:23], s[0:1], 64')
        a(f'v_lshrrev_b32 v{vTMP}, 6, v0\nv_and_b32 v{vLANE}, 63, v0\nv_readfirstlane_b32 s{sW}, v{vTMP}')
        a(f'''s_and_b32 s{sKG}, s2, 7
s_lshr_b32 s{sCG}, s2, 3
s_lshr_b32 s{sG}, s{sKG}, 1
s_lshl_b32 s{sG}, s{sG}, 3
s_lshr_b32 s{sT0}, s{sCG}, 2
s_add_u32 s{sG}, s{sG}, s{sT0}
s_and_b32 s{sJ}, s{sKG}, 1
s_lshl_b32 s{sJ}, s{sJ}, 2
s_and_b32 s{sT1}, s{sCG}, 3
s_add_u32 s{sJ}, s{sJ}, s{sT1}
s_lshl_b32 s{sT1}, s{sT1}, 1
s_xor_b32 s{sROT}, s{sT0}, s{sT1}
s_mov_b32 s{sTMO}, 200000
s_lshl_b32 s{sM0W}, s{sW}, 10
s_lshl_b32 s{sM0W2}, s{sW}, 11
v_lshlrev_b32 v{vL16}, 4, v{vLANE}''')
        a(f'''s_and_b32 s{sT0}, s{sW}, 1
s_lshl_b32 s{sT0}, s{sT0}, 5
s_lshl_b32 s{sT1}, s{sKG}, 6
s_add_u32 s{sT0}, s{sT0}, s{sT1}
s_mul_i32 s{sT0}, s{sT0}, 2752
s_mul_i32 s{sT1}, s{sCG}, 96
s_add_u32 s{sT0}, s{sT0}, s{sT1}''')
        for i in range(3):
            r = vA0 + i
            a(f'''v_add_u32 v{vTMP}, {64 * i}, v{vLANE}
v_mul_u32_u24 v{vTMP2}, 43691, v{vTMP}
v_lshrrev_b32 v{vTMP2}, 18, v{vTMP2}
v_mul_u32_u24 v{r}, {2752 - 96}, v{vTMP2}
v_lshl_add_u32 v{r}, v{vTMP}, 4, v{r}
v_add_u32 v{r}, s{sT0}, v{r}''')
        a(f'''v_lshrrev_b32 v{vTMP}, 4, v{vLANE}
v_lshlrev_b32 v{vKVZ}, 4, v{vTMP}
v_add_u32 v{vKVZ}, 1024, v{vKVZ}
v_lshlrev_b32 v{vTMP}, 10, v{vTMP}
v_and_b32 v{vA3}, 15, v{vLANE}
v_lshl_add_u32 v{vA3}, v{vA3}, 4, v{vTMP}
s_lshl_b32 s{sT0}, s{sW}, 13
v_add_u32 v{vA3}, s{sT0}, v{vA3}''')
        a(f'''s_lshl_b32 s{sT0}, s{sG}, 16
s_lshl_b32 s{sT1}, s{sW}, 14
s_add_u32 s{sT0}, s{sT0}, s{sT1}
v_lshrrev_b32 v{vTMP}, 3, v{vLANE}
v_lshlrev_b32 v{vTMP}, 10, v{vTMP}
v_and_b32 v{vFL}, 7, v{vLANE}
v_lshl_add_u32 v{vA4}, v{vFL}, 4, v{vTMP}
v_add_u32 v{vA4}, s{sT0}, v{vA4}
v_add_u32 v{vA5}, 8192, v{vA4}
v_lshlrev_b32 v{vFL}, 2, v{vFL}''')
        for u in range(8):
            a(f's_xor_b32 s{TA + u}, s{sROT}, {u}\ns_lshl_b32 s{TA + u}, s{TA + u}, 7')
        a(f'''s_cmp_ge_u32 s2, 172
s_cselect_b32 s{sT0}, 172, 0
s_sub_u32 s{sT0}, s2, s{sT0}
s_lshr_b32 s{sT2}, s{sT0}, 2
s_and_b32 s{sT3}, s2, 3
s_lshl_b32 s{sT0}, s{sT2}, 15
s_lshl_b32 s{sT1}, s{sT3}, 8
s_add_u32 s{sT0}, s{sT0}, s{sT1}
v_add_u32 v{vA3}, s{sT0}, v{vA3}''')
        a('s_waitcnt lgkmcnt(0)')
        a(self.stamp('karg'))
        a(f's_load_dword s{sNONCE}, s[22:23], {EPOCH}')
        a(f'''s_cmp_lt_u32 s{sW}, 2
s_cselect_b32 s{sGU}, s12, s14
s_cselect_b32 s{sGU + 1}, s13, s15
s_cmp_lt_u32 s{sCG}, 29
s_cselect_b32 s{sGU + 2}, {512 * 1376 * 2}, 0
s_mov_b32 s{sGU + 3}, 0x20000
s_mul_i32 m0, s{sW}, 3072''')
        for i in range(3):
            a(f'buffer_load_dwordx4 v{vA0 + i}, {sr(sGU)}, 0 offen lds', 'p0ld')
            if i < 2:
                a('s_add_u32 m0, m0, 1024')
        a(f'''s_cmp_ge_u32 s2, 172
s_cselect_b32 s{sOD}, s8, s16
s_cselect_b32 s{sOD + 1}, s9, s17
s_mov_b32 s{sOD + 2}, {1376 * 512 * 2}
s_cselect_b32 s{sOD + 2}, {512 * 512 * 2}, s{sOD + 2}
s_mov_b32 s{sOD + 3}, 0x20000
s_add_u32 m0, s{sM0W2}, {L_P0OD}
s_movk_i32 s{sT0}, 3072''')
        a(f'buffer_load_dwordx4 v{vA3}, {sr(sOD)}, 0 offen lds', 'p0ld')
        a(f'buffer_load_dwordx4 v{vA3}, {sr(sOD)}, s{sT0} offen offset:1024 lds', 'p0ld')
        a(self.srd(sX, 4, 2048 * 512 * 2))
        order = [(0, 0), (0, 1), (1, 0), (1, 1)] + [(0, i) for i in range(2, 8)] + [(1, i) for i in range(2, 8)]
        self.xloads = [I(f'buffer_load_dwordx4 {vr(T3 + 32 * g + 4 * i, 4)}, v{vA4 + g}, {sr(sX)}, s{TA + i} offen') for g, i in order]
        for g in self.xloads[:6]:
            a(g)
        a(self.srd(sWQ, 6, 512 * 1536 * 2))
        a(self.srd(sOUT, 18, 2048 * 512 * 2))
        a(self.srd(sWS, 22, WS_BYTES))

    def p0(self):
        a = self.a
        R = 192
        a(f'''v_and_b32 v{vTMP}, 1, v{vLANE}
v_bfe_u32 v{vTMP2}, v{vLANE}, 1, 1
v_lshl_add_u32 v{vTMP}, v{vTMP}, 1, v{vTMP2}
v_lshlrev_b32 v{vA0}, 3, v{vTMP}
v_bfe_u32 v{vTMP}, v{vLANE}, 2, 2
v_lshrrev_b32 v{vTMP2}, 5, v{vLANE}
v_lshl_add_u32 v{vTMP}, v{vTMP2}, 3, v{vTMP}
v_mul_u32_u24 v{vTMP}, 96, v{vTMP}
v_add_u32 v{vA0}, v{vA0}, v{vTMP}
v_bfe_u32 v{vTMP}, v{vLANE}, 4, 1
v_mul_u32_u24 v{vTMP}, 6144, v{vTMP}
s_lshl_b32 s{sT0}, s{sW}, 5
v_add3_u32 v{vA0}, v{vA0}, v{vTMP}, s{sT0}
v_bfe_u32 v{vTMP}, v{vLANE}, 2, 2
v_lshrrev_b32 v{vTMP2}, 4, v{vLANE}
v_lshl_add_u32 v{vTMP}, v{vTMP2}, 3, v{vTMP}
v_lshlrev_b32 v{vTMP}, 8, v{vTMP}
v_and_b32 v{vTMP2}, 3, v{vLANE}
v_lshl_add_u32 v{vTMP}, v{vTMP2}, 3, v{vTMP}
s_lshl_b32 s{sT0}, s{sW}, 6
s_add_u32 s{sT0}, s{sT0}, {L_P0OD}
v_add_u32 v{vA1}, s{sT0}, v{vTMP}''')
        a(f'''s_mul_i32 s{sT0}, s{sCG}, 3
s_add_u32 s{sT0}, s{sT0}, s{sW}
s_mul_i32 s20, s{sT0}, {33 * 1024}
s_add_u32 s20, s20, {WT_GU}
s_cmp_lt_u32 s{sT0}, 86
s_cselect_b32 s20, s20, {OOB}
s_cmp_lt_u32 s{sW}, 3
s_cselect_b32 s20, s20, {OOB}
s_lshl_b32 s{sT3}, s{sT3}, 3
s_lshl_b32 s{sT0}, s{sW}, 1
s_add_u32 s{sT3}, s{sT3}, s{sT0}
s_cmp_ge_u32 s2, 172
s_cselect_b32 s{sT0}, 16, 43
s_mov_b32 s{sT1}, {WT_D}
s_cselect_b32 s{sT1}, {WT_O}, s{sT1}
s_mul_i32 s21, s{sT3}, s{sT0}
s_add_u32 s21, s21, s{sT2}
s_lshl_b32 s21, s21, 10
s_add_u32 s21, s21, s{sT1}
s_cmp_lt_u32 s2, 236
s_cselect_b32 s21, s21, {OOB}
s_lshl_b32 s23, s{sT0}, 10
v_add_u32 v{R + 36}, s21, v{vL16}''')
        a(f'''s_lshr_b32 s{sT0}, s{sKG}, 2
s_lshl_b32 s{sT0}, s{sT0}, 9
s_and_b32 s{sT1}, s{sKG}, 3
s_lshl_b32 s{sT1}, s{sT1}, 2
s_add_u32 s{sT0}, s{sT0}, s{sT1}
s_add_u32 s{sT0}, s{sT0}, 32768
s_add_u32 s{sT0}, s{sT0}, s20
v_and_b32 v{vTMP}, 31, v{vLANE}
v_lshl_add_u32 v{vA2}, v{vTMP}, 4, s{sT0}
s_lshl_b32 s{sT0}, s{sKG}, 12
s_add_u32 s{sT0}, s{sT0}, s20
v_add_u32 v{vA3}, s{sT0}, v{vL16}''')
        for r in range(4):
            a(f'v_mov_b32 v{ONES + r}, 0x3f803f80\nv_mov_b32 v{EPS4 + r}, 0x{f2u(1e-6):x}\nv_mov_b32 v{R + 32 + r}, -1')
        a(f'v_mov_b32 v{vNEG}, 0x{f2u(-1e-6 * LOG2E):x}')
        a(f'''s_lshl_b32 s{sT0}, s{sJ}, 2
s_add_u32 s{sT0}, s{sT0}, s{sW}
s_lshl_b32 s{sT1}, s{sT0}, 5
s_add_u32 s16, s{sT1}, s{sG}
s_and_b32 s17, s16, -8
s_mul_i32 s16, s16, {SLOT}
s_add_u32 s16, s16, {KVP}
s_mul_i32 s17, s17, {SLOT}
s_add_u32 s17, s17, {KVP}
s_mul_i32 s18, s{sT0}, {4 * SLOT}
s_add_u32 s18, s18, {KVG}
s_lshr_b32 s{sT1}, s{sG}, 3
s_mul_i32 s{sT1}, s{sT1}, {SLOT}
s_add_u32 s19, s18, s{sT1}
s_and_b32 s{sT0}, s{sG}, 7
s_lshl_b32 s{sT1}, s{sW}, 1
s_cmp_eq_u32 s{sT0}, s{sT1}
s_cselect_b32 s19, s19, {OOB}
v_add_u32 v{R + 37}, s19, v{vL16}
v_add_u32 v{R + 38}, s19, v{vKVZ}
s_lshl_b32 s{sFLINE}, s{sG}, 2
s_add_u32 s{sFLINE}, s{sFLINE}, s{sW}
s_lshl_b32 s{sFLINE}, s{sFLINE}, 7
s_add_u32 s{sFLINE}, s{sFLINE}, {F_X}
s_lshl_b32 s{sT0}, s{sJ}, 2
s_add_u32 s{sFLAG}, s{sFLINE}, s{sT0}''')
        a(waitvm('p0ld'))
        a('s_barrier')
        a(self.stamp('p0data'))
        rd = []
        for s in range(4):
            for h in range(2):
                rd.append(I(f'ds_read_b64_tr_b16 {vr(R + 4 * s + 2 * h, 2)}, v{vA0} offset:{s * 1536 + h * 384}'))
        for i in range(2):
            for h in range(2):
                rd.append(I(f'ds_read_b64_tr_b16 {vr(R + 16 + 4 * i + 2 * h, 2)}, v{vA1} offset:{i * 32 + h * 1024}', 'p0rd'))
        a(interleave(rd, self.xloads[6:10], start=2, every=3))
        a(f'v_mov_b32 v{R + 24}, 0')
        st = []
        for s in range(4):
            st.append(I(f'buffer_store_dwordx4 {vr(R + 4 * s, 4)}, v{vA3}, {sr(sWS)}, 0 offen offset:{s * 1024} sc1', 'p0st'))
        st.append(I(f'buffer_store_dwordx4 {vr(R + 16, 4)}, v{R + 36}, {sr(sWS)}, 0 offen sc1', 'p0st'))
        st.append(I(f'buffer_store_dwordx4 {vr(R + 20, 4)}, v{R + 36}, {sr(sWS)}, s23 offen sc1', 'p0st'))
        for va, so in ((vL16, 's16'), (vKVZ, 's16'), (R + 37, '0'), (R + 38, '0')):
            st.append(I(f'buffer_store_dwordx4 {vr(R + 32, 4)}, v{va}, {sr(sWS)}, {so} offen sc1', 'p0st'))
        dots = [I(f'v_dot2c_f32_bf16 v{R + 24}, v{R + i}, v{ONES}') for i in range(16)]
        side = []
        xl = self.xloads[10:]
        for i in range(max(len(st), len(xl))):
            if i < len(xl):
                side.append(xl[i])
            if i < len(st):
                side.append(st[i])
        a(interleave(dots, side, start=0, every=1))
        a(f'''v_mov_b32 v{R + 25}, v{R + 24}
v_permlane32_swap_b32 v{R + 24}, v{R + 25}
v_add_f32 v{R + 24}, v{R + 24}, v{R + 25}
v_cvt_pk_bf16_f32 v{R + 25}, v{R + 24}, v{R + 24}
v_lshlrev_b32 v{R + 25}, 16, v{R + 25}
v_sub_f32 v{R + 25}, v{R + 24}, v{R + 25}
v_cvt_pk_bf16_f32 v{R + 24}, v{R + 24}, v{R + 25}''')
        a(f'buffer_store_dword v{R + 24}, v{vA2}, {sr(sWS)}, 0 offen sc1', 'p0st')
        a(f's_add_u32 s{sNONCE}, s{sNONCE}, 0x9e3779b1')

    def wdma(self, m, c):
        out = []
        for uu in range(2):
            for i in range(2):
                u = 2 * c + uu
                lds = WSLOT[(m, c)] + uu * 8192 + i * 4096
                g = I(f's_add_u32 m0, s{sM0W}, {lds}\ns_add_u32 s{sT1}, s{TA + u}, {WOFF[m] + i * 32 * 3072}')
                g += I(f'buffer_load_dwordx4 v{vA0}, {sr(sWQ)}, s{sT1} offen lds', f'w{m}{c}')
                out.append(g)
        return out

    def ln1(self):
        a = self.a
        a(f'''v_lshrrev_b32 v{vTMP}, 3, v{vLANE}
v_and_b32 v{vTMP2}, 2, v{vTMP}
s_and_b32 s{sT0}, s{sW}, 1
s_lshl_b32 s{sT0}, s{sT0}, 2
v_or_b32 v{vTMP2}, s{sT0}, v{vTMP2}
v_and_b32 v{vA0}, 7, v{vLANE}
v_xor_b32 v{vA0}, v{vA0}, v{vTMP2}
v_mul_u32_u24 v{vTMP2}, 3072, v{vTMP}
v_lshl_add_u32 v{vA0}, v{vA0}, 4, v{vTMP2}
s_mul_i32 s{sT0}, s{sW}, {8 * 3072}
s_lshl_b32 s{sT1}, s{sJ}, 7
s_add_u32 s{sT0}, s{sT0}, s{sT1}
v_add_u32 v{vA0}, s{sT0}, v{vA0}''')
        for u in range(8):
            a(f's_mul_i32 s{TA + u}, s{TA + u}, {64 * 3072 // 128}')
        a(f'''v_and_b32 v{vTMP2}, 7, v{vLANE}
v_xor_b32 v{vTMP}, v{vTMP}, v{vTMP2}
v_lshlrev_b32 v{vA1}, 4, v{vTMP}
v_and_b32 v{vTMP}, 3, v{vLANE}
v_lshl_add_u32 v{vA1}, v{vTMP}, 8, v{vA1}
v_bfe_u32 v{vTMP}, v{vLANE}, 2, 1
v_lshl_add_u32 v{vA1}, v{vTMP}, 12, v{vA1}
v_add_u32 v{vA1}, s{sM0W}, v{vA1}''')
        a(f'''v_lshrrev_b32 v{vTMP}, 4, v{vLANE}
v_and_b32 v{vTMP2}, 15, v{vLANE}
v_xor_b32 v{vTMP2}, v{vTMP2}, v{vTMP}
v_lshlrev_b32 v{vTMP2}, 4, v{vTMP2}
v_lshl_add_u32 v{vA2}, v{vTMP}, 8, v{vTMP2}
v_xor_b32 v{vA3}, 64, v{vA2}''')
        a(f'''v_bfe_u32 v{vTMP2}, v{vLANE}, 2, 2
v_lshl_add_u32 v{vTMP2}, v{vTMP}, 3, v{vTMP2}
v_lshlrev_b32 v{vA6}, 7, v{vTMP2}
v_bfe_u32 v{vTMP2}, v{vLANE}, 3, 2
v_xor_b32 v{vTMP2}, s{sW}, v{vTMP2}
v_lshl_add_u32 v{vA6}, v{vTMP2}, 5, v{vA6}
v_and_b32 v{vTMP2}, 3, v{vLANE}
v_lshl_add_u32 v{vA5}, v{vTMP2}, 3, v{vA6}
v_add_u32 v{vA6}, 0x10000, v{vA5}
v_add_u32 v{vA7}, 0x20000, v{vA5}''')
        main = []
        S, SS, RS, MR, U = 192, 194, 196, 198, 200
        for g in range(2):
            X = T3 + 32 * g
            main += [I(f'v_mov_b32 v{S}, 0\nv_mov_b32 v{S + 1}, 0\nv_mov_b32 v{SS}, 0\nv_mov_b32 v{SS + 1}, 0')]
            for i in range(32):
                main.append(I(f'v_dot2c_f32_bf16 v{S + (i & 1)}, v{X + i}, v{ONES}'))
                main.append(I(f'v_dot2c_f32_bf16 v{SS + (i & 1)}, v{X + i}, v{X + i}'))
            main.append(I(f'v_add_f32 v{S}, v{S}, v{S + 1}\nv_add_f32 v{SS}, v{SS}, v{SS + 1}'))
            for m in ('quad_perm:[1,0,3,2]', 'quad_perm:[2,3,0,1]', 'row_half_mirror'):
                main.append(I(f'v_add_f32_dpp v{S}, v{S}, v{S} {m} row_mask:0xf bank_mask:0xf\nv_add_f32_dpp v{SS}, v{SS}, v{SS} {m} row_mask:0xf bank_mask:0xf'))
            main.append(I(f'''v_mul_f32 v{S}, 0x{f2u(1 / 512):x}, v{S}
v_mul_f32 v{SS}, 0x{f2u(1 / 512):x}, v{SS}
v_fma_f32 v{SS}, -v{S}, v{S}, v{SS}
v_max_f32 v{SS}, 0, v{SS}
v_add_f32 v{SS}, 0x{f2u(1e-5):x}, v{SS}
v_rsq_f32 v{RS}, v{SS}
v_mul_f32 v{MR}, -v{S}, v{RS}'''.replace('v_mul_f32 v%d, -v' % MR, 'v_mul_f32_e64 v%d, -v' % MR)))
            if g == 0:
                main.append(waitlg('p0rd') + I('s_barrier'))
            for i in range(8):
                for d in range(4):
                    x = X + 4 * i + d
                    u = U + 2 * (d & 1)
                    main.append(I(f'v_lshlrev_b32 v{u}, 16, v{x}\nv_and_b32 v{u + 1}, 0xffff0000, v{x}'))
                    main.append(I(f'v_pk_fma_f32 {vr(u, 2)}, {vr(u, 2)}, {vr(RS, 2)}, {vr(MR, 2)} op_sel_hi:[1,0,0]\nv_cvt_pk_bf16_f32 v{x}, v{u}, v{u + 1}'))
                main.append(I(f'ds_write_b128 v{vA1}, {vr(X + 4 * i, 4)} offset:{L_XN + i * 8192 + g * 128}', 'xnw'))
        side = []
        for m, c in [('k', 0), ('k', 1), ('k', 2), ('k', 3), ('v', 0), ('v', 1)]:
            side += self.wdma(m, c)
        a(interleave(main, side, start=0, every=len(main) / 25.0))
        a(self.stamp('ln1'))

    def phi(self, acc, dst):
        g = []
        t = 80
        for i in range(16):
            g.append(I(f'v_fmamk_f32 v{t + i}, v{acc + i}, 0x{f2u(LOG2E):x}, v{vNEG}'))
            g.append(I(f'v_exp_f32_e64 v{t + i}, v{t + i} clamp'))
            g.append(I(f'v_max_f32 v{acc + i}, v{acc + i}, v{EPS4}'))
            g.append(I(f'v_add_f32 v{acc + i}, v{acc + i}, v{t + i}'))
            if i & 1:
                g.append(I(f'v_cvt_pk_bf16_f32 v{dst + (i >> 1)}, v{acc + i - 1}, v{acc + i}'))
        return g

    def p1(self):
        a = self.a
        PK, VF, KV, Z = 96, 104, 112, 116

        def reads(m, s):
            c, sl = s >> 2, s & 3
            adr = WSLOT[(m, c)] + sl * 4096
            base, off = vA5 + (adr >> 16), adr & 0xffff
            wf = BR + 4 * (s & 3)
            g = [I(f'ds_read_b64_tr_b16 {vr(wf, 2)}, v{base} offset:{off}', f'r{m}{s}'),
                 I(f'ds_read_b64_tr_b16 {vr(wf + 2, 2)}, v{base} offset:{off + 512}', f'r{m}{s}')]
            if m == 'k':
                for tt in range(4):
                    g.append(I(f'ds_read_b128 {ar((4 * s + tt) * 4, 4)}, v{vA2 + (s & 1)} offset:{L_XN + (4 * s + tt) * 1024}', f'r{m}{s}'))
            return g

        def mf(m, s):
            acc = {'k': ACC0, 'v': ACC1, 'q': ACC0}[m]
            wf = vr(BR + 4 * (s & 3), 4)
            g = []
            for tt in range(4):
                x = ar((4 * s + tt) * 4, 4)
                c = vr(acc + 4 * tt, 4) if s else ('0' if m == 'v' else vr(EPS4, 4))
                ab = f'{wf}, {x}' if m == 'q' else f'{x}, {wf}'
                g.append(I(f'v_mfma_f32_16x16x32_bf16 {vr(acc + 4 * tt, 4)}, {ab}, {c}'))
            return g

        def sync(m, c):
            return waitvm(f'w{m}{c}') + I('s_barrier')

        after_sync = {('k', 2): self.wdma('v', 2) + self.wdma('v', 3), ('k', 3): self.wdma('q', 0) + self.wdma('q', 1),
                      ('v', 0): self.wdma('q', 2) + self.wdma('q', 3)}

        def run(seq, extra):
            pend = []
            for n, (m, s) in enumerate(seq):
                a(waitlg(f'r{m}{s}'))
                side = []
                if n + 2 < len(seq):
                    m2, s2 = seq[n + 2]
                    if s2 % 4 == 0:
                        a(sync(m2, s2 >> 2))
                        pend += after_sync.get((m2, s2 >> 2), [])
                    side += reads(m2, s2)
                fill = extra.get(n, [])
                dma = [pend.pop(0) for _ in range(min(2, len(pend)))]
                side = side + dma + fill
                a(interleave(mf(m, s), side, start=0, every=4.0 / max(1, len(side))))
            assert not pend

        a(waitlg('xnw'))
        a(sync('k', 0))
        skip = self.label('L_nf')
        a(f's_cmp_lg_u32 s{sW}, 0\ns_cbranch_scc1 {skip}')
        a(cond_begin())
        a(f's_lshl_b32 s{sT0}, s2, 2\ns_add_u32 s{sT0}, s{sT0}, {F_P0}\nv_mov_b32 v{vTMP}, s{sNONCE}\nv_mov_b32 v{vTMP2}, 0\n'
          f's_mov_b64 exec, 1\nbuffer_store_dword v{vTMP}, v{vTMP2}, {sr(sWS)}, s{sT0} offen sc1\ns_mov_b64 exec, -1')
        a(cond_end())
        a(f'{skip}:')
        for g in reads('k', 0) + reads('k', 1):
            a(g)
        seq = [('k', s) for s in range(16)] + [('v', s) for s in range(16)]
        ph = self.phi(ACC0, PK)
        extra = {}
        per = 6
        for n in range(12):
            extra[18 + n] = ph[n * per:(n + 1) * per]
        extra[30] = [I(f'v_mfma_f32_16x16x32_bf16 {vr(Z, 4)}, {vr(PK, 4)}, {vr(ONES, 4)}, 0'),
                     I(f'v_mfma_f32_16x16x32_bf16 {vr(Z, 4)}, {vr(PK + 4, 4)}, {vr(ONES, 4)}, {vr(Z, 4)}')]
        run(seq, extra)
        a(self.stamp('vdone'))
        for r in range(4):
            a(f'v_min_u32 v{Z + r}, -2, v{Z + r}')
        a(f'buffer_store_dwordx4 {vr(Z, 4)}, v{vKVZ}, {sr(sWS)}, s16 offen sc1')
        for i in range(8):
            a(f'v_cvt_pk_bf16_f32 v{VF + i}, v{ACC1 + 2 * i}, v{ACC1 + 2 * i + 1}')
        a(f'v_mfma_f32_16x16x32_bf16 {vr(KV, 4)}, {vr(PK, 4)}, {vr(VF, 4)}, 0')
        a(f'v_mfma_f32_16x16x32_bf16 {vr(KV, 4)}, {vr(PK + 4, 4)}, {vr(VF + 4, 4)}, {vr(KV, 4)}')
        for r in range(4):
            a(f'v_min_u32 v{KV + r}, -2, v{KV + r}')
        a(f'buffer_store_dwordx4 {vr(KV, 4)}, v{vL16}, {sr(sWS)}, s16 offen sc1')
        a(f's_movk_i32 s{sT0}, {F_P0}\nbuffer_load_dwordx4 {vr(VF, 4)}, v{vL16}, {sr(sWS)}, s{sT0} offen sc1')
        a(sync('q', 0))
        for g in reads('q', 0) + reads('q', 1):
            a(g)
        tabs = []
        for u in range(8):
            tabs.append(I(f's_xor_b32 s{sT0}, s{sROT}, {u}\ns_lshl_b32 s{TA + u}, s{sT0}, 11\ns_lshl_b32 s{TB + u}, s{sT0}, 12'))
        run([('q', s) for s in range(16)], {2 + u: [tabs[u]] for u in range(8)})
        a('s_barrier')
        a(self.stamp('qdone'))
        ok, again = self.label('L_ok'), self.label('L_again')

        def chk():
            return (f'v_cmp_ne_u32 vcc, s{sNONCE}, v{VF}\nv_cmp_ne_u32 s[{sT0}:{sT1}], s{sNONCE}, v{VF + 1}\ns_or_b64 vcc, vcc, s[{sT0}:{sT1}]\n'
                    f'v_cmp_ne_u32 s[{sT0}:{sT1}], s{sNONCE}, v{VF + 2}\ns_or_b64 vcc, vcc, s[{sT0}:{sT1}]\n'
                    f'v_cmp_ne_u32 s[{sT0}:{sT1}], s{sNONCE}, v{VF + 3}\ns_or_b64 vcc, vcc, s[{sT0}:{sT1}]')
        a(chk())
        a(f's_cbranch_scc0 {ok}')
        a(cond_begin())
        a(f'{again}:\ns_movk_i32 s{sT2}, {F_P0}\nbuffer_load_dwordx4 {vr(VF, 4)}, v{vL16}, {sr(sWS)}, s{sT2} offen sc1')
        a(self.timeout())
        a('s_waitcnt vmcnt(0)')
        a(chk())
        a(f's_cbranch_scc1 {again}')
        a(cond_end())
        a(f'{ok}:')

    def gather(self, n, sbase, dst):
        a = self.a
        R = 192
        again, ok = self.label('L_again'), self.label('L_ok')
        a(f'{again}:')
        for i in range(n):
            if i % 2 == 0:
                a(f's_add_u32 s{sT2}, s{sbase}, {i * SLOT}')
            off = (i % 2) * SLOT
            a(f'buffer_load_dwordx4 {vr(R + 8 * i, 4)}, v{vL16}, {sr(sWS)}, s{sT2} offen offset:{off} sc1')
            a(f'buffer_load_dwordx4 {vr(R + 8 * i + 4, 4)}, v{vKVZ}, {sr(sWS)}, s{sT2} offen offset:{off} sc1')
        a(self.timeout())
        for i in range(1, n):
            for p in range(4):
                src = vr(R + 2 * p, 2) if i == 1 else vr(dst + 2 * p, 2)
                a(f'v_pk_add_f32 {vr(dst + 2 * p, 2)}, {src}, {vr(R + 8 * i + 2 * p, 2)}')
        a(f'v_cmp_u_f32 vcc, v{dst}, v{dst + 1}')
        for p in range(1, 4):
            a(f'v_cmp_u_f32 s[{sT0}:{sT1}], v{dst + 2 * p}, v{dst + 2 * p + 1}\ns_or_b64 vcc, vcc, s[{sT0}:{sT1}]')
        a(f's_cbranch_scc0 {ok}')
        a(f'v_max_u32 v{vTMP}, v{R}, v{R + 1}')
        for i in range(1, 4 * n):
            a(f'v_max3_u32 v{vTMP}, v{vTMP}, v{R + 2 * i}, v{R + 2 * i + 1}')
        a(f'v_cmp_eq_u32 vcc, -1, v{vTMP}\ns_cbranch_vccnz {again}')
        a(f'{ok}:')

    def frag_loads(self, kind):
        out = []
        if kind == 'wo':
            for s in range(16):
                out.append(I(f'buffer_load_dwordx4 {vr(T3 + 4 * s, 4)}, v{vA0}, {sr(sWS)}, s{TA + (s >> 1)} offen offset:{(s & 1) * 1024} sc1', 'wo'))
        elif kind in ('t0', 't1', 't2'):
            p = int(kind[1])
            for s in range(32):
                d = ar(128 * p + 4 * s, 4) if p < 2 else vr(T3 + 4 * s, 4)
                out.append(I(f'buffer_load_dwordx4 {d}, v{vA1 + p}, {sr(sWS)}, s{TB + (s >> 2)} offen offset:{(s & 3) * 1024} sc1', kind))
            out.append(I(f's_mov_b32 s{sT0}, 0x8000\nbuffer_load_dwordx4 {vr(EXT + 4 * p, 4)}, v{vA1 + p}, {sr(sWS)}, s{sT0} offen sc1', kind))
        elif kind == 'wd':
            for s in range(43):
                if s < 16:
                    so = f's{TA + (s >> 1)}'
                    pre = ''
                elif s < 32:
                    so = f's{sT0}'
                    pre = f's_add_u32 s{sT0}, s{TA + ((s & 15) >> 1)}, 16384\n'
                else:
                    so = f's{sT0}'
                    pre = f's_mov_b32 s{sT0}, {(s & ~1) * 1024}\n'
                out.append(I(f'{pre}buffer_load_dwordx4 {ar(4 * s, 4)}, v{vA0}, {sr(sWS)}, {so} offen offset:{(s & 1) * 1024} sc1', 'wd'))
        return out

    def blk_dma(self, ldsbase, u, halves, tag, va, extra=0):
        g = I(f's_add_u32 m0, s{sM0W2}, {ldsbase + u * 8192}')
        so = f's{TC + u}'
        if extra:
            g += I(f's_add_u32 s{sT0}, s{TC + u}, {extra}')
            so = f's{sT0}'
        for h in halves:
            g += I(f'buffer_load_dwordx4 v{va}, {sr(sWS)}, {so} offen offset:{h * 1024} sc1 lds', tag)
        return g

    def attn(self):
        a = self.a
        PQ, KV = 96, 112
        skip = self.label('L_ne')
        a(f's_or_b32 s{sT0}, s2, s{sW}\ns_cbranch_scc1 {skip}')
        a(cond_begin())
        a(f'v_mov_b32 v{vTMP}, s{sNONCE}\nv_mov_b32 v{vTMP2}, {EPOCH}\ns_mov_b64 exec, 1\nbuffer_store_dword v{vTMP}, v{vTMP2}, {sr(sWS)}, 0 offen sc1\ns_mov_b64 exec, -1')
        a(cond_end())
        a(f'{skip}:')
        skip = self.label('L_nr')
        a(f's_cmp_eq_u32 s19, {OOB}\ns_cbranch_scc1 {skip}')
        a(cond_begin())
        self.gather(8, 17, KV)
        for r in range(8):
            a(f'v_min_u32 v{KV + r}, -2, v{KV + r}')
        a(f'buffer_store_dwordx4 {vr(KV, 4)}, v{vL16}, {sr(sWS)}, s19 offen sc1')
        a(f'buffer_store_dwordx4 {vr(KV + 4, 4)}, v{vKVZ}, {sr(sWS)}, s19 offen sc1')
        a(cond_end())
        a(f'{skip}:')
        a(self.stamp('hop1'))
        a(f'''s_mov_b32 s20, s18
s_lshl_b32 s{sT0}, s{sJ}, 2
s_add_u32 s21, s{sT0}, s{sW}
s_lshl_b32 s{sT1}, s21, 14
s_add_u32 s{sT1}, s{sT1}, {WT_O}
v_add_u32 v{vA0}, s{sT1}, v{vL16}
s_mul_i32 s{sT1}, s21, {33 * 1024}
s_add_u32 s{sT1}, s{sT1}, {WT_GU}
v_add_u32 v{vA1}, s{sT1}, v{vL16}
v_add_u32 v{vA2}, {32 * 33 * 1024}, v{vA1}
s_lshl_b32 s22, s{sW}, 3
s_add_u32 s22, s22, s{sJ}
s_mul_i32 s{sT1}, s22, {33 * 1024}
s_add_u32 s{sT1}, s{sT1}, {WT_GU + 64 * 33 * 1024}
s_cmp_lt_u32 s22, 22
s_cselect_b32 s{sT1}, s{sT1}, {OOB}
v_add_u32 v{vA3}, s{sT1}, v{vL16}
v_and_b32 v{vTMP}, 15, v{vLANE}
v_lshlrev_b32 v{vTMP}, 10, v{vTMP}
v_lshrrev_b32 v{vTMP2}, 4, v{vLANE}
v_lshl_add_u32 v{vTMP}, v{vTMP2}, 3, v{vTMP}
s_lshl_b32 s{sT0}, s{sG}, 16
s_lshl_b32 s{sT1}, s21, 5
s_add_u32 s{sT1}, s{sT1}, s{sT0}
v_add_u32 v{vA4}, s{sT1}, v{vTMP}
s_add_u32 s{sT0}, s{sT0}, s{sM0W2}
s_add_u32 s{sT0}, s{sT0}, {OBUF}
v_add_u32 v{vA5}, s{sT0}, v{vL16}''')
        for u in range(8):
            a(f's_lshl_b32 s{TC + u}, s{TB + u}, 1')
        XR = 104
        side = self.frag_loads('wo')
        for tt in range(4):
            side.append(I(f's_mov_b32 s{sT0}, {tt * 16384}\nbuffer_load_dwordx2 {vr(XR + 2 * tt, 2)}, v{vA4}, {sr(sX)}, s{sT0} offen'))
        a(interleave(self.phi(ACC0, PQ), side, start=0, every=3.5))
        a(f'''v_lshrrev_b32 v{vTMP}, 5, v{vLANE}
v_lshlrev_b32 v{vTMP}, 11, v{vTMP}
v_bfe_u32 v{vTMP2}, v{vLANE}, 4, 1
v_lshl_add_u32 v{vTMP}, v{vTMP2}, 9, v{vTMP}
v_and_b32 v{vTMP2}, 15, v{vLANE}
v_lshl_add_u32 v{vA6}, v{vTMP2}, 4, v{vTMP}
v_add_u32 v{vA7}, 0x10000, v{vA6}''')
        self.gather(4, 20, KV)
        a(self.stamp('hop2'))
        AK, NUM, DEN, X = 120, 48, 64, 80
        for i in range(4):
            a(f'v_cvt_pk_bf16_f32 v{AK + i}, v{KV + 2 * i}, v{KV + 2 * i + 1}')
        for tt in range(4):
            a(f'v_mfma_f32_16x16x16_bf16 {vr(DEN + 4 * tt, 4)}, {vr(AK + 2, 2)}, {vr(PQ + 2 * tt, 2)}, {vr(EPS4, 4)}')
        for tt in range(4):
            a(f'v_mfma_f32_16x16x16_bf16 {vr(NUM + 4 * tt, 4)}, {vr(AK, 2)}, {vr(PQ + 2 * tt, 2)}, 0')
        a(f's_lshl_b32 s23, s{sJ}, 13')
        for tt in range(4):
            a(f'v_rcp_f32 v{DEN + 4 * tt}, v{DEN + 4 * tt}')
        for hh in range(2):
            for t in range(2):
                tt = 2 * hh + t
                for p in range(2):
                    n = NUM + 4 * tt + 2 * p
                    a(f'v_pk_mul_f32 {vr(n, 2)}, {vr(n, 2)}, {vr(DEN + 4 * tt, 2)} op_sel_hi:[1,0]')
                    a(f'v_cvt_pk_bf16_f32 v{X + 4 * hh + 2 * t + p}, v{n}, v{n + 1}')
            a(f'v_permlane16_swap_b32 v{X + 4 * hh}, v{X + 4 * hh + 2}\nv_permlane16_swap_b32 v{X + 4 * hh + 1}, v{X + 4 * hh + 3}')
            a(f'buffer_store_dwordx4 {vr(X + 4 * hh, 4)}, v{vA5}, {sr(sWS)}, s23 offen offset:{hh * 1024} sc1', 'ost')
        self.pre = self.frag_loads('t0') + self.frag_loads('t1')
        n1, n2 = self.opt.get('o_n1', 8), self.opt.get('o_n2', 8)
        for g in self.pre[:n1]:
            a(g)
        for tt in range(4):
            for p in range(2):
                a(f'v_lshlrev_b32 v{HACC + 4 * tt + 2 * p}, 16, v{XR + 2 * tt + p}\nv_and_b32 v{HACC + 4 * tt + 2 * p + 1}, 0xffff0000, v{XR + 2 * tt + p}')
        a(waitvm('ost'))
        a(self.flag_set(0))
        for g in self.pre[n1:n1 + n2]:
            a(g)
        self.pre = self.pre[n1 + n2:]
        a(self.flag_load(0, vTMP))
        a(self.flag_check(0, vTMP))
        a(self.stamp('oflag'))

    def gemm16(self, steps, aop, pre_sync, side_at, ring0):
        a = self.a
        LA = 3

        def reads(n):
            vb, off = steps[n]
            return [I(f'ds_read_b128 {vr(32 + 4 * ((4 * (n + ring0) + tt) & 15), 4)}, v{vb} offset:{off + (tt >> 1) * 1024 + (tt & 1) * 256}', f'g{n + ring0}') for tt in range(4)]
        for n in range(min(LA, len(steps))):
            a(pre_sync.get(n, []))
            for g in reads(n):
                a(g)
        for n in range(len(steps)):
            a(waitlg(f'g{n + ring0}'))
            side = []
            if n + LA < len(steps):
                a(pre_sync.get(n + LA, []))
                side = reads(n + LA)
            mf = [I(f'v_mfma_f32_16x16x32_bf16 {vr(HACC + 4 * tt, 4)}, {aop(n)}, {vr(32 + 4 * ((4 * (n + ring0) + tt) & 15), 4)}, {vr(HACC + 4 * tt, 4)}') for tt in range(4)]
            a(interleave(mf, side, start=0, every=1))
            for g in side_at.get(n, []):
                a(g)

    def p2(self):
        a = self.a
        for u in range(8):
            a(self.blk_dma(L_O, u, (0, 1), f'o{u >> 1}', vA5))
        sync = {4 * c: waitvm(f'o{c}') + I('s_barrier') for c in range(4)}
        n = self.opt.get('p2_n', 12)
        side = {4 + i: [self.pre.pop(0)] for i in range(n)}
        self.gemm16([(vA7, s * 4096) for s in range(16)], lambda s: vr(T3 + 4 * s, 4), sync, side, 0)
        a(self.stamp('p2mm'))
        X, S, SS, U = 80, 64, 68, 72
        a(f'v_add_u32 v{vA5}, {HBUF - OBUF}, v{vA5}')
        for hh in range(2):
            for t in range(2):
                for p in range(2):
                    h = HACC + 4 * (2 * hh + t) + 2 * p
                    a(f'v_cvt_pk_bf16_f32 v{X + 4 * hh + 2 * t + p}, v{h}, v{h + 1}')
            a(f'v_permlane16_swap_b32 v{X + 4 * hh}, v{X + 4 * hh + 2}\nv_permlane16_swap_b32 v{X + 4 * hh + 1}, v{X + 4 * hh + 3}')
            a(f'buffer_store_dwordx4 {vr(X + 4 * hh, 4)}, v{vA5}, {sr(sWS)}, s23 offen offset:{hh * 1024} sc1', 'hst')
        for tt in range(4):
            h = HACC + 4 * tt
            a(f'''v_pk_add_f32 {vr(U, 2)}, {vr(h, 2)}, {vr(h + 2, 2)}
v_pk_mul_f32 {vr(U + 2, 2)}, {vr(h, 2)}, {vr(h, 2)}
v_pk_fma_f32 {vr(U + 2, 2)}, {vr(h + 2, 2)}, {vr(h + 2, 2)}, {vr(U + 2, 2)}
v_add_f32 v{S + tt}, v{U}, v{U + 1}
v_add_f32 v{SS + tt}, v{U + 2}, v{U + 3}''')
        a(f'''s_lshl_b32 s{sT0}, s{sG}, 2
s_add_u32 s{sT0}, s{sT0}, s{sW}
s_lshl_b32 s20, s{sT0}, 12
s_add_u32 s20, s20, {STATS}
s_lshl_b32 s{sT0}, s{sJ}, 9
s_add_u32 s{sT0}, s{sT0}, s20
v_lshlrev_b32 v{vA4}, 3, v{vLANE}''')
        for b in (S, SS):
            a(f'v_permlane16_swap_b32 v{b}, v{b + 1}\nv_permlane16_swap_b32 v{b + 2}, v{b + 3}')
        for b in (S, SS):
            a(f'v_add_f32 v{b}, v{b}, v{b + 1}\nv_add_f32 v{b + 2}, v{b + 2}, v{b + 3}')
        for b in (S, SS):
            a(f'v_permlane32_swap_b32 v{b}, v{b + 2}')
        a(f'v_add_f32 v{U}, v{S}, v{S + 2}\nv_add_f32 v{U + 1}, v{SS}, v{SS + 2}')
        a(f'buffer_store_dwordx2 {vr(U, 2)}, v{vA4}, {sr(sWS)}, s{sT0} offen sc1', 'hst')
        n1 = self.opt.get('h_n1', 10)
        n2 = self.opt.get('h_n2', 10)
        for g in self.pre[:n1]:
            a(g)
        a(waitvm('hst'))
        a(self.flag_set(1))
        for g in self.pre[n1:n1 + n2]:
            a(g)
        self.pre = self.pre[n1 + n2:]
        a(f's_mul_i32 s{sT1}, s21, {43 * 1024}\ns_add_u32 s{sT1}, s{sT1}, {WT_D}\nv_add_u32 v{vA0}, s{sT1}, v{vL16}')
        a(self.flag_load(1, vTMP))
        a(self.flag_check(1, vTMP))
        a(self.stamp('hflag'))

    def epilogue(self, n):
        acc = (ACC0, ACC1)[n & 1]
        hh, p = n & 1, n >> 1
        o = OUTR + 4 * (n & 1)
        g = []
        for i0 in range(0, 8, 2):
            for i in (i0, i0 + 1):
                g.append(I(f'v_mul_f32 v{acc + 8 + i}, v{acc + i}, v{acc + 8 + i}'))
                g.append(I(f'v_mul_f32 v{acc + i}, v{acc + i}, v{vC1 + hh}'))
            for i in (i0, i0 + 1):
                g.append(I(f'v_exp_f32 v{acc + i}, v{acc + i}'))
            for i in (i0, i0 + 1):
                g.append(I(f'v_fma_f32 v{acc + i}, v{acc + i}, v{vQ + hh}, v{vQ + hh}'))
            for i in (i0, i0 + 1):
                g.append(I(f'v_rcp_f32 v{acc + i}, v{acc + i}'))
            for i in (i0, i0 + 1):
                g.append(I(f'v_mul_f32 v{acc + i}, v{acc + i}, v{acc + 8 + i}'))
            g.append(I(f'v_cvt_pk_bf16_f32 v{o + (i0 >> 1)}, v{acc + i0}, v{acc + i0 + 1}'))
        va, so = (vL16, f's{20 + p}') if p < 2 else (vA1, '0')
        g.append(I(f'buffer_store_dwordx4 {vr(o, 4)}, v{va}, {sr(sWS)}, {so} offen offset:{hh * 1024} sc1', f'ast{n}'))
        return g

    def p3(self):
        a = self.a
        ST = ACC1
        for u in range(8):
            a(self.blk_dma(L_H, u, (0,), f'h0{(0, 0, 1, 1, 2, 2, 2, 2)[u]}', vA5))
        for j in range(8):
            a(f'buffer_load_dwordx2 {vr(ST + 2 * j, 2)}, v{vA4}, {sr(sWS)}, s20 offen offset:{j * 512} sc1')
        h1 = [self.blk_dma(L_H, u, (1,), 'h1', vA5) for u in range(8)]
        setup = [I(x) for x in f'''s_mul_i32 s{sT2}, s{sG}, {172 * 1024}
s_add_u32 s{sT2}, s{sT2}, {ACT}
s_lshl_b32 s20, s21, 11
s_add_u32 s20, s20, s{sT2}
s_add_u32 s21, s20, 65536
s_lshl_b32 s{sT3}, s22, 11
s_add_u32 s{sT3}, s{sT3}, s{sT2}
s_add_u32 s{sT3}, s{sT3}, 131072'''.split('\n')]
        setup.append(I(f's_cmp_lt_u32 s22, 22\ns_cselect_b32 s22, s{sT3}, {OOB}\nv_add_u32 v{vA1}, s22, v{vL16}'))
        setup.append(I(f's_lshr_b32 s{sT3}, s{sM0W}, 1\ns_add_u32 s{sT3}, s{sT3}, {L_ST}\nv_add_u32 v{vA4}, s{sT3}, v{vA4}'))
        setup.append(I(f'v_and_b32 v{vKVZ}, 31, v{vLANE}\nv_lshlrev_b32 v{vKVZ}, 3, v{vKVZ}\nv_add_u32 v{vKVZ}, {L_ST}, v{vKVZ}'))
        for g in setup:
            a(g)
        st1 = []
        for j in range(1, 8):
            st1.append(I(f'v_add_f32 v{ST}, v{ST}, v{ST + 2 * j}'))
            st1.append(I(f'v_add_f32 v{ST + 1}, v{ST + 1}, v{ST + 2 * j + 1}'))
        st1.append(I(f'ds_write_b64 v{vA4}, {vr(ST, 2)}', 'stw'))
        st2 = []
        for hh in range(2):
            for w in range(4):
                st2.append(I(f'ds_read_b64 {vr(ST + 8 * hh + 2 * w, 2)}, v{vKVZ} offset:{w * 512 + hh * 256}'))
        st3 = []
        for hh in range(2):
            b = ST + 8 * hh
            txt = f'''v_add_f32 v{b}, v{b}, v{b + 2}
v_add_f32 v{b + 1}, v{b + 1}, v{b + 3}
v_add_f32 v{b + 4}, v{b + 4}, v{b + 6}
v_add_f32 v{b + 5}, v{b + 5}, v{b + 7}
v_add_f32 v{b}, v{b}, v{b + 4}
v_add_f32 v{b + 1}, v{b + 1}, v{b + 5}
v_mul_f32 v{b}, 0x{f2u(-1 / 512):x}, v{b}
v_mul_f32 v{b + 1}, 0x{f2u(1 / 512):x}, v{b + 1}
v_cvt_pk_bf16_f32 v{BEXT + 4 * hh}, v{b}, v{b}
v_fma_f32 v{b + 1}, -v{b}, v{b}, v{b + 1}
v_mov_b32 v{BEXT + 4 * hh + 1}, v{BEXT + 4 * hh}
v_max_f32 v{b + 1}, 0, v{b + 1}
v_mov_b32 v{BEXT + 4 * hh + 2}, v{BEXT + 4 * hh}
v_add_f32 v{vQ + hh}, 0x{f2u(1e-5):x}, v{b + 1}
v_mov_b32 v{BEXT + 4 * hh + 3}, v{BEXT + 4 * hh}
v_rsq_f32 v{b}, v{vQ + hh}
v_mul_f32 v{vC1 + hh}, 0x{f2u(-LOG2E):x}, v{b}'''
            st3 += [I(x) for x in txt.split('\n')]

        LA = 6
        NU = 6

        def rd(q):
            n, s = divmod(q, 32)
            return I(f'ds_read_b128 {vr(BR + 4 * (q & 7), 4)}, v{vL16} offset:{L_H + s * 2048 + (n & 1) * 1024}', f'b{q}')

        presync = {0: waitvm('h00') + I('s_barrier'), 8: waitvm('h01') + I('s_barrier'), 16: waitvm('h02') + I('s_barrier'),
                   32: waitvm('h1') + I('s_barrier')}
        fill = {}

        def put(n, g0, groups, per):
            k = 0
            gap = g0
            acc = 0.0
            while k < len(groups):
                acc += per
                while acc >= 1 - 1e-9 and k < len(groups):
                    fill.setdefault((n + gap // 33, gap % 33), []).append(groups[k])
                    k += 1
                    acc -= 1
                gap += 1
        put(0, 0, h1, 0.5)
        put(0, 11, st1, 3)
        fill.setdefault((0, 17), []).append(waitlg('stw') + I('s_barrier'))
        put(0, 17, st2, 4)
        put(0, 21, st3, 3.4)
        assert len(self.pre) <= 33
        rest = self.pre + self.frag_loads('t2')
        put(0, 16, rest, len(rest) / 62.0)
        wd = self.frag_loads('wd')
        put(2, 13, wd[:32], 32 / 53.0)
        put(4, 0, wd[32:], 0.4)
        for n in range(1, NU):
            put(n, 3, self.epilogue(n - 1), 3.2)
        fill.setdefault((3, 14), []).append(waitvm('ast1') + self.flag_set(2))
        FR = EXT
        fill.setdefault((4, 30), []).append(self.flag_load(2, FR))
        fill.setdefault((2, 0), []).append(I(f's_mul_i32 s{sT2}, s{sG}, {172 * 1024}\ns_add_u32 s{sT2}, s{sT2}, s{sM0W2}\ns_add_u32 s{sT2}, s{sT2}, {ACT}\nv_add_u32 v{vA5}, s{sT2}, v{vL16}'))
        fill.setdefault((5, 14), []).append(waitvm('ast3') + self.flag_set(3) + self.flag_check(2, FR))
        put(5, 15, [self.blk_dma(L_O, u, (0, 1), 'a1', vA5) for u in range(8)], 0.5)

        for q in range(LA):
            a(presync.get(q, []))
            a(rd(q))
        for n in range(NU):
            acc = vr((ACC0, ACC1)[n & 1], 16)
            p = n >> 1
            for s in range(33):
                q = 32 * n + s
                if s < 32:
                    if s % 2 == 0:
                        a(waitlg(f'b{q + 1}'))
                    A = ar(128 * p + 4 * s, 4) if p < 2 else vr(T3 + 4 * s, 4)
                    a(f'v_mfma_f32_32x32x16_bf16 {acc}, {A}, {vr(BR + 4 * (q & 7), 4)}, {acc if s else 0}')
                    if q + LA < 32 * NU:
                        a(presync.get(q + LA, []))
                        a(rd(q + LA))
                else:
                    a(f'v_mfma_f32_32x32x16_bf16 {acc}, {vr(EXT + 4 * p, 4)}, {vr(BEXT + 4 * (n & 1), 4)}, {acc}')
                for g in fill.pop((n, s), []):
                    a(g)
            if n in (1,):
                a(self.stamp(f'u{n}'))
        assert not fill, fill.keys()
        a('s_barrier')
        a(self.stamp('p3mm'))
        for g in self.epilogue(5):
            a(g)

    def p4(self):
        a = self.a
        FR = EXT
        a(self.flag_load(3, FR))
        d2 = [self.blk_dma(L_H, u, (0, 1), f'a2{u >> 1}', vA5, 65536) for u in range(8)]
        k = self.opt.get('p4_k', 10)
        side = {k: [waitvm('ast5') + self.flag_set(4) + self.flag_check(3, FR)] + d2[:3]}
        for i in range(5):
            side[k + 1 + i] = [d2[3 + i]]
        side[15].append(self.flag_load(4, FR))
        steps = [(vA7, s * 4096) for s in range(16)] + [(vA6, s * 4096) for s in range(16)]
        sync = {0: waitvm('a1') + I('s_barrier')}
        for c in range(4):
            sync[16 + 4 * c] = waitvm(f'a2{c}') + I('s_barrier')
        a(f'''s_mul_i32 s{sT3}, s{sW}, {16384 - 2048}
s_cmp_lt_u32 s{sW}, 3
s_cselect_b32 s{sT2}, s{sT3}, {OOB}
v_add_u32 v{vA2}, s{sT2}, v{vA5}
s_cmp_lt_u32 s{sW}, 2
s_cselect_b32 s{sT2}, s{sT3}, {OOB}
v_add_u32 v{vA3}, s{sT2}, v{vA5}
s_lshl_b32 s{sT3}, s{sW}, 14''')
        d3 = []
        for j in range(8):
            g = I(f's_add_u32 m0, s{sT3}, {L_O + j * 2048}\ns_mov_b32 s{sT0}, {131072 + j * 2048}')
            for h in range(2):
                g += I(f'buffer_load_dwordx4 v{vA2 if j < 6 else vA3}, {sr(sWS)}, s{sT0} offen offset:{h * 1024} sc1 lds', f'a3{j >> 2}')
            d3.append(g)
        k3 = self.opt.get('p4_k3', 29)
        side[k3] = [self.flag_check(4, FR)] + d3
        self.gemm16(steps, lambda n: ar(4 * n, 4), sync, side, 0)
        a(self.stamp('p4b'))
        order = [0, 4, 8, 1, 5, 9, 2, 6, 10, 3, 7]
        sync = {0: waitvm('a30') + I('s_barrier'), 6: waitvm('a31') + I('s_barrier')}
        a(f'''v_and_b32 v{vTMP}, 31, v{vLANE}
v_lshlrev_b32 v{vTMP}, 10, v{vTMP}
v_lshrrev_b32 v{vTMP2}, 5, v{vLANE}
v_lshl_add_u32 v{vA4}, v{vTMP2}, 4, v{vTMP}
s_lshl_b32 s{sT0}, s{sG}, 16
s_lshl_b32 s{sT1}, s{sJ}, 7
s_add_u32 s{sT0}, s{sT0}, s{sT1}
s_lshl_b32 s{sT1}, s{sW}, 5
s_add_u32 s20, s{sT0}, s{sT1}
s_add_u32 s21, s20, 32768''')
        self.gemm16([(vA7, s * 4096) for s in order], lambda n: ar(4 * (32 + order[n]), 4), sync, {}, 32)
        X = 96
        for hh in range(2):
            for t in range(2):
                for p in range(2):
                    h = HACC + 4 * (2 * hh + t) + 2 * p
                    a(f'v_cvt_pk_bf16_f32 v{X + 4 * hh + 2 * t + p}, v{h}, v{h + 1}')
            a(f'v_permlane16_swap_b32 v{X + 4 * hh}, v{X + 4 * hh + 2}\nv_permlane16_swap_b32 v{X + 4 * hh + 1}, v{X + 4 * hh + 3}')
            a(f'buffer_store_dwordx4 {vr(X + 4 * hh, 4)}, v{vA4}, {sr(sOUT)}, s{20 + hh} offen')
        if self.prof:
            a('s_waitcnt vmcnt(0)')
            a(self.stamp('end'))
            a('s_memrealtime s[20:21]\ns_waitcnt lgkmcnt(0)')
            a(f's_lshl_b32 s{sT0}, s2, 2\ns_add_u32 s{sT0}, s{sT0}, s{sW}\ns_lshl_b32 s{sT0}, s{sT0}, 7\ns_add_u32 s{sT0}, s{sT0}, {PROF}')
            a(f'v_mov_b32 v{vTMP2}, 0\ns_mov_b64 exec, 1')
            vals = ['s3', 's20'] + [f's{STAMP0 + 2 * i}' for i in range(self.nstamp)]
            for i, v in enumerate(vals):
                a(f'v_mov_b32 v{vTMP}, {v}\nbuffer_store_dword v{vTMP}, v{vTMP2}, {sr(sWS)}, s{sT0} offen offset:{4 * i}')

    def build(self):
        self.prologue()
        self.p0()
        self.ln1()
        self.p1()
        self.attn()
        self.p2()
        self.p3()
        self.p4()
        self.a('L_end:\ns_endpgm')
        items = resolve_waits(self.items, True)
        items = pad_hazards(items, True)
        head = open('sequential_preLN__linear_attn_block__swiglu_ffn__prompt.s.ref').read().split('; Override launch')[0]
        txt = head + '; @launch grid=(256,1,1) block=(256,1,1) lds=163840\n'
        txt += f'.amdgcn_target "amdgcn-amd-amdhsa--gfx950"\n.text\n.globl {NAME}\n.p2align 8\n.type {NAME},@function\n{NAME}:\n'
        txt += render(items) + '\n'
        txt += f'''.section .rodata,"a"
.p2align 6
.amdhsa_kernel {NAME}
  .amdhsa_next_free_vgpr 512
  .amdhsa_next_free_sgpr 102
  .amdhsa_accum_offset 256
  .amdhsa_group_segment_fixed_size 0
  .amdhsa_kernarg_size 80
  .amdhsa_user_sgpr_count 2
  .amdhsa_user_sgpr_kernarg_segment_ptr 1
  .amdhsa_system_sgpr_workgroup_id_x 1
.end_amdhsa_kernel
'''
        return txt


if __name__ == '__main__':
    out = sys.argv[1]
    prof = len(sys.argv) > 2 and sys.argv[2] == 'prof'
    opt = {}
    for kv in sys.argv[3:]:
        k, v = kv.split('=')
        opt[k] = int(v)
    g = Gen(prof, opt)
    open(out, 'w').write(g.build())
    open(out + '.stamps', 'w').write(' '.join(g.stamp_names))
```

```python
import sys, struct
sys.path.insert(0, 'exp')
from asmlib import *

NAME = 'sequential_preLN__linear_attn_block__swiglu_ffn__prompt_kernel'


def f2u(x):
    return struct.unpack('<I', struct.pack('<f', x))[0]


LOG2E = 1.4426950408889634

EPOCH = 0
F_P0 = 0x1000
F_X = 0x2000
STATS = 0x20000
KVG = 0xA0000
KVP = 0x100000
WT_O = 0x220000
WT_D = 0x2A0000
WT_GU = 0x400000
OBUF = 0x700000
HBUF = 0x900000
ACT = 0xB00000
PROF = 0x1100000
WS_BYTES = 0x2000000
OOB = 0x40000000
SLOT = 1152

sX, sWQ, sGU, sOD, sOUT, sWS = 24, 28, 32, 36, 40, 44
sNONCE, sW, sG, sJ, sROT, sTMO = 48, 49, 50, 51, 52, 53
sT0, sT1, sT2, sT3 = 54, 55, 56, 57
sM0W = 58
sM0W2 = 59
sFLAG = 60
sFLINE = 61
sKG, sCG = 62, 63
TA, TB, TC = 64, 4, 12
STAMP0 = 72

vL16 = 1
vA0, vA1, vA2, vA3, vA4, vA5, vA6, vA7 = 2, 3, 4, 5, 6, 7, 8, 9
vLANE = 10
vFL = 11
vKVZ = 12
vTMP = 13
vTMP2 = 14
vNEG = 15
HACC = 16
ACC0, ACC1 = 32, 48
BR = 64
EXT = 96
BEXT = 108
vC1, vQ = 116, 118
OUTR = 120
T3 = 128
ONES = 120
EPS4 = 124

L_XN = 0
L_P0GU = 0
L_P0OD = 12288
L_O = 65536
L_H = 0
L_ST = 131072
WSLOT = {('k', 0): 65536, ('k', 1): 81920, ('k', 2): 98304, ('k', 3): 114688,
         ('v', 0): 131072, ('v', 1): 147456, ('v', 2): 0, ('v', 3): 65536,
         ('q', 0): 16384, ('q', 1): 81920, ('q', 2): 32768, ('q', 3): 98304}
WOFF = {'q': 0, 'k': 1024, 'v': 2048}


def vr(b, n):
    return f'v[{b}:{b + n - 1}]'


def ar(b, n):
    return f'a[{b}:{b + n - 1}]'


def sr(b, n=4):
    return f's[{b}:{b + n - 1}]'


class Gen:
    def __init__(self, prof=False, opt=None):
        self.items = []
        self.prof = prof
        self.nstamp = 0
        self.stamp_names = []
        self.nlabel = 0
        self.opt = opt or {}
        sets = {0: 'start karg p0data ln1 vdone qdone hop1 hop2 oflag p2mm hflag u1 p3mm p4b end',
                1: 'start qdone hop1 phiq hop2 ost oack oflag o0 p2mm hst hack hflag h0 end',
                2: 'start hflag h0 u0 u1 u2 u3 u4 p3mm ep5 a1 s10 s16 p4b end'}
        self.want = sets[self.opt.get('st', 0)].split()

    def a(self, x, tag=None):
        if isinstance(x, str):
            self.items += I(x, tag)
        else:
            self.items += x

    def label(self, p='L'):
        self.nlabel += 1
        return f'{p}_{self.nlabel}'

    def stamp(self, name):
        if not self.prof:
            return []
        if name not in self.want:
            return []
        r = STAMP0 + 2 * self.nstamp
        assert r + 1 <= 101, 'too many stamps'
        self.nstamp += 1
        self.stamp_names.append(name)
        return I(f's_memtime s[{r}:{r + 1}]')

    def srd(self, d, b, n):
        return f's_mov_b32 s{d}, s{b}\ns_mov_b32 s{d + 1}, s{b + 1}\ns_mov_b32 s{d + 2}, {n}\ns_mov_b32 s{d + 3}, 0x20000'

    def timeout(self):
        return f's_sub_u32 s{sTMO}, s{sTMO}, 1\ns_cbranch_scc1 L_end'

    def flag_set(self, kind):
        return I(f's_add_u32 s{sT0}, s{sFLAG}, {kind * 16384}\nv_mov_b32 v{vTMP}, s{sNONCE}\nv_mov_b32 v{vTMP2}, 0\n'
                 f's_mov_b64 exec, 1\nbuffer_store_dword v{vTMP}, v{vTMP2}, {sr(sWS)}, s{sT0} offen sc1\ns_mov_b64 exec, -1')

    def flag_load(self, kind, reg):
        return I(f's_add_u32 s{sT0}, s{sFLINE}, {kind * 16384}\nbuffer_load_dword v{reg}, v{vFL}, {sr(sWS)}, s{sT0} offen sc1')

    def flag_check(self, kind, reg):
        ok, again = self.label('L_ok'), self.label('L_again')
        it = I(f'v_cmp_ne_u32 vcc, s{sNONCE}, v{reg}\ns_cbranch_vccz {ok}')
        it += cond_begin()
        it += I(f'{again}:') + self.flag_load(kind, reg) + I(self.timeout())
        it += I(f's_waitcnt vmcnt(0)\nv_cmp_ne_u32 vcc, s{sNONCE}, v{reg}\ns_cbranch_vccnz {again}')
        it += cond_end()
        it += I(f'{ok}:')
        return it

    def prologue(self):
        a = self.a
        if self.prof:
            a('s_memrealtime s[20:21]\ns_waitcnt lgkmcnt(0)\ns_mov_b32 s3, s20')
        a(self.stamp('start'))
        a('s_cmp_ge_u32 s2, 256\ns_cbranch_scc1 L_end')
        a('s_load_dwordx16 s[4:19], s[0:1], 0\ns_load_dwordx4 s[20:23], s[0:1], 64')
        a(f'v_lshrrev_b32 v{vTMP}, 6, v0\nv_and_b32 v{vLANE}, 63, v0\nv_readfirstlane_b32 s{sW}, v{vTMP}')
        a(f'''s_and_b32 s{sKG}, s2, 7
s_lshr_b32 s{sCG}, s2, 3
s_lshr_b32 s{sG}, s{sKG}, 1
s_lshl_b32 s{sG}, s{sG}, 3
s_lshr_b32 s{sT0}, s{sCG}, 2
s_add_u32 s{sG}, s{sG}, s{sT0}
s_and_b32 s{sJ}, s{sKG}, 1
s_lshl_b32 s{sJ}, s{sJ}, 2
s_and_b32 s{sT1}, s{sCG}, 3
s_add_u32 s{sJ}, s{sJ}, s{sT1}
s_lshl_b32 s{sT1}, s{sT1}, 1
s_xor_b32 s{sROT}, s{sT0}, s{sT1}
s_mov_b32 s{sTMO}, 200000
s_lshl_b32 s{sM0W}, s{sW}, 10
s_lshl_b32 s{sM0W2}, s{sW}, 11
v_lshlrev_b32 v{vL16}, 4, v{vLANE}''')
        a(f'''s_and_b32 s{sT0}, s{sW}, 1
s_lshl_b32 s{sT0}, s{sT0}, 5
s_lshl_b32 s{sT1}, s{sKG}, 6
s_add_u32 s{sT0}, s{sT0}, s{sT1}
s_mul_i32 s{sT0}, s{sT0}, 2752
s_mul_i32 s{sT1}, s{sCG}, 96
s_add_u32 s{sT0}, s{sT0}, s{sT1}''')
        for i in range(3):
            r = vA0 + i
            a(f'''v_add_u32 v{vTMP}, {64 * i}, v{vLANE}
v_mul_u32_u24 v{vTMP2}, 43691, v{vTMP}
v_lshrrev_b32 v{vTMP2}, 18, v{vTMP2}
v_mul_u32_u24 v{r}, {2752 - 96}, v{vTMP2}
v_lshl_add_u32 v{r}, v{vTMP}, 4, v{r}
v_add_u32 v{r}, s{sT0}, v{r}''')
        a(f'''v_lshrrev_b32 v{vTMP}, 4, v{vLANE}
v_lshlrev_b32 v{vKVZ}, 4, v{vTMP}
v_add_u32 v{vKVZ}, 1024, v{vKVZ}
v_lshlrev_b32 v{vTMP}, 10, v{vTMP}
v_and_b32 v{vA3}, 15, v{vLANE}
v_lshl_add_u32 v{vA3}, v{vA3}, 4, v{vTMP}
s_lshl_b32 s{sT0}, s{sW}, 13
v_add_u32 v{vA3}, s{sT0}, v{vA3}''')
        a(f'''s_lshl_b32 s{sT0}, s{sG}, 16
s_lshl_b32 s{sT1}, s{sW}, 14
s_add_u32 s{sT0}, s{sT0}, s{sT1}
v_lshrrev_b32 v{vTMP}, 3, v{vLANE}
v_lshlrev_b32 v{vTMP}, 10, v{vTMP}
v_and_b32 v{vFL}, 7, v{vLANE}
v_lshl_add_u32 v{vA4}, v{vFL}, 4, v{vTMP}
v_add_u32 v{vA4}, s{sT0}, v{vA4}
v_add_u32 v{vA5}, 8192, v{vA4}
v_lshlrev_b32 v{vFL}, 2, v{vFL}''')
        for u in range(8):
            a(f's_xor_b32 s{TA + u}, s{sROT}, {u}\ns_lshl_b32 s{TA + u}, s{TA + u}, 7')
        a(f'''s_cmp_ge_u32 s2, 172
s_cselect_b32 s{sT0}, 172, 0
s_sub_u32 s{sT0}, s2, s{sT0}
s_lshr_b32 s{sT2}, s{sT0}, 2
s_and_b32 s{sT3}, s2, 3
s_lshl_b32 s{sT0}, s{sT2}, 15
s_lshl_b32 s{sT1}, s{sT3}, 8
s_add_u32 s{sT0}, s{sT0}, s{sT1}
v_add_u32 v{vA3}, s{sT0}, v{vA3}''')
        a('s_waitcnt lgkmcnt(0)')
        a(self.stamp('karg'))
        cal = self.opt.get('cal', 0)
        if cal in (1, 2):
            base = 10 if cal == 1 else 22
            a(self.srd(sX, base, 2048 * 512 * 2 if cal == 1 else WS_BYTES * 4))
            a(f's_lshl_b32 s{sT0}, s2, 13\ns_add_u32 s{sT0}, s{sT0}, s{sM0W2}\nv_mov_b32 v20, s{sT0}')
            if cal == 2:
                a(f'v_add_u32 v20, {WS_BYTES * 2}, v20')
            for i in range(16):
                a(f'buffer_load_dword v21, v20, {sr(sX)}, 0 offen offset:{i * 128}\nv_and_b32 v21, 0, v21\nv_add_u32 v20, v20, v21')
        if cal == 3:
            for i in range(3072):
                a(f'v_add_u32 v{20 + (i & 7)}, 0x12345, v{20 + (i & 7)}')
        if cal == 4:
            a(f's_mov_b32 s{sT0}, 12\nL_cal:')
            for i in range(256):
                a(f'v_add_u32 v{20 + (i & 7)}, 0x12345, v{20 + (i & 7)}')
            a(f's_sub_u32 s{sT0}, s{sT0}, 1\ns_cmp_lg_u32 s{sT0}, 0\ns_cbranch_scc1 L_cal')
        a(f's_load_dword s{sNONCE}, s[22:23], {EPOCH}')
        a(f'''s_cmp_lt_u32 s{sW}, 2
s_cselect_b32 s{sGU}, s12, s14
s_cselect_b32 s{sGU + 1}, s13, s15
s_cmp_lt_u32 s{sCG}, 29
s_cselect_b32 s{sGU + 2}, {512 * 1376 * 2}, 0
s_mov_b32 s{sGU + 3}, 0x20000
s_mul_i32 m0, s{sW}, 3072''')
        for i in range(3):
            a(f'buffer_load_dwordx4 v{vA0 + i}, {sr(sGU)}, 0 offen lds', 'p0ld')
            if i < 2:
                a('s_add_u32 m0, m0, 1024')
        a(f'''s_cmp_ge_u32 s2, 172
s_cselect_b32 s{sOD}, s8, s16
s_cselect_b32 s{sOD + 1}, s9, s17
s_mov_b32 s{sOD + 2}, {1376 * 512 * 2}
s_cselect_b32 s{sOD + 2}, {512 * 512 * 2}, s{sOD + 2}
s_mov_b32 s{sOD + 3}, 0x20000
s_add_u32 m0, s{sM0W2}, {L_P0OD}
s_movk_i32 s{sT0}, 3072''')
        a(f'buffer_load_dwordx4 v{vA3}, {sr(sOD)}, 0 offen lds', 'p0ld')
        a(f'buffer_load_dwordx4 v{vA3}, {sr(sOD)}, s{sT0} offen offset:1024 lds', 'p0ld')
        a(self.srd(sX, 4, 2048 * 512 * 2))
        order = [(0, 0), (0, 1), (1, 0), (1, 1)] + [(0, i) for i in range(2, 8)] + [(1, i) for i in range(2, 8)]
        self.xloads = [I(f'buffer_load_dwordx4 {vr(T3 + 32 * g + 4 * i, 4)}, v{vA4 + g}, {sr(sX)}, s{TA + i} offen') for g, i in order]
        for g in self.xloads[:6]:
            a(g)
        a(self.srd(sWQ, 6, 512 * 1536 * 2))
        a(self.srd(sOUT, 18, 2048 * 512 * 2))
        a(self.srd(sWS, 22, WS_BYTES))

    def p0(self):
        a = self.a
        R = 192
        a(f'''v_and_b32 v{vTMP}, 1, v{vLANE}
v_bfe_u32 v{vTMP2}, v{vLANE}, 1, 1
v_lshl_add_u32 v{vTMP}, v{vTMP}, 1, v{vTMP2}
v_lshlrev_b32 v{vA0}, 3, v{vTMP}
v_bfe_u32 v{vTMP}, v{vLANE}, 2, 2
v_lshrrev_b32 v{vTMP2}, 5, v{vLANE}
v_lshl_add_u32 v{vTMP}, v{vTMP2}, 3, v{vTMP}
v_mul_u32_u24 v{vTMP}, 96, v{vTMP}
v_add_u32 v{vA0}, v{vA0}, v{vTMP}
v_bfe_u32 v{vTMP}, v{vLANE}, 4, 1
v_mul_u32_u24 v{vTMP}, 6144, v{vTMP}
s_lshl_b32 s{sT0}, s{sW}, 5
v_add3_u32 v{vA0}, v{vA0}, v{vTMP}, s{sT0}
v_bfe_u32 v{vTMP}, v{vLANE}, 2, 2
v_lshrrev_b32 v{vTMP2}, 4, v{vLANE}
v_lshl_add_u32 v{vTMP}, v{vTMP2}, 3, v{vTMP}
v_lshlrev_b32 v{vTMP}, 8, v{vTMP}
v_and_b32 v{vTMP2}, 3, v{vLANE}
v_lshl_add_u32 v{vTMP}, v{vTMP2}, 3, v{vTMP}
s_lshl_b32 s{sT0}, s{sW}, 6
s_add_u32 s{sT0}, s{sT0}, {L_P0OD}
v_add_u32 v{vA1}, s{sT0}, v{vTMP}''')
        a(f'''s_mul_i32 s{sT0}, s{sCG}, 3
s_add_u32 s{sT0}, s{sT0}, s{sW}
s_mul_i32 s20, s{sT0}, {33 * 1024}
s_add_u32 s20, s20, {WT_GU}
s_cmp_lt_u32 s{sT0}, 86
s_cselect_b32 s20, s20, {OOB}
s_cmp_lt_u32 s{sW}, 3
s_cselect_b32 s20, s20, {OOB}
s_lshl_b32 s{sT3}, s{sT3}, 3
s_lshl_b32 s{sT0}, s{sW}, 1
s_add_u32 s{sT3}, s{sT3}, s{sT0}
s_cmp_ge_u32 s2, 172
s_cselect_b32 s{sT0}, 16, 43
s_mov_b32 s{sT1}, {WT_D}
s_cselect_b32 s{sT1}, {WT_O}, s{sT1}
s_mul_i32 s21, s{sT3}, s{sT0}
s_add_u32 s21, s21, s{sT2}
s_lshl_b32 s21, s21, 10
s_add_u32 s21, s21, s{sT1}
s_cmp_lt_u32 s2, 236
s_cselect_b32 s21, s21, {OOB}
s_lshl_b32 s23, s{sT0}, 10
v_add_u32 v{R + 36}, s21, v{vL16}''')
        a(f'''s_lshr_b32 s{sT0}, s{sKG}, 2
s_lshl_b32 s{sT0}, s{sT0}, 9
s_and_b32 s{sT1}, s{sKG}, 3
s_lshl_b32 s{sT1}, s{sT1}, 2
s_add_u32 s{sT0}, s{sT0}, s{sT1}
s_add_u32 s{sT0}, s{sT0}, 32768
s_add_u32 s{sT0}, s{sT0}, s20
v_and_b32 v{vTMP}, 31, v{vLANE}
v_lshl_add_u32 v{vA2}, v{vTMP}, 4, s{sT0}
s_lshl_b32 s{sT0}, s{sKG}, 12
s_add_u32 s{sT0}, s{sT0}, s20
v_add_u32 v{vA3}, s{sT0}, v{vL16}''')
        for r in range(4):
            a(f'v_mov_b32 v{ONES + r}, 0x3f803f80\nv_mov_b32 v{EPS4 + r}, 0x{f2u(1e-6):x}\nv_mov_b32 v{R + 32 + r}, -1')
        a(f'v_mov_b32 v{vNEG}, 0x{f2u(-1e-6 * LOG2E):x}')
        a(f'''s_lshl_b32 s{sT0}, s{sJ}, 2
s_add_u32 s{sT0}, s{sT0}, s{sW}
s_lshl_b32 s{sT1}, s{sT0}, 5
s_add_u32 s16, s{sT1}, s{sG}
s_and_b32 s17, s16, -8
s_mul_i32 s16, s16, {SLOT}
s_add_u32 s16, s16, {KVP}
s_mul_i32 s17, s17, {SLOT}
s_add_u32 s17, s17, {KVP}
s_mul_i32 s18, s{sT0}, {4 * SLOT}
s_add_u32 s18, s18, {KVG}
s_lshr_b32 s{sT1}, s{sG}, 3
s_mul_i32 s{sT1}, s{sT1}, {SLOT}
s_add_u32 s19, s18, s{sT1}
s_and_b32 s{sT0}, s{sG}, 7
s_lshl_b32 s{sT1}, s{sW}, 1
s_cmp_eq_u32 s{sT0}, s{sT1}
s_cselect_b32 s19, s19, {OOB}
v_add_u32 v{R + 37}, s19, v{vL16}
v_add_u32 v{R + 38}, s19, v{vKVZ}
s_lshl_b32 s{sFLINE}, s{sG}, 2
s_add_u32 s{sFLINE}, s{sFLINE}, s{sW}
s_lshl_b32 s{sFLINE}, s{sFLINE}, 7
s_add_u32 s{sFLINE}, s{sFLINE}, {F_X}
s_lshl_b32 s{sT0}, s{sJ}, 2
s_add_u32 s{sFLAG}, s{sFLINE}, s{sT0}''')
        a(waitvm('p0ld'))
        a('s_barrier')
        a(self.stamp('p0data'))
        rd = []
        for s in range(4):
            for h in range(2):
                rd.append(I(f'ds_read_b64_tr_b16 {vr(R + 4 * s + 2 * h, 2)}, v{vA0} offset:{s * 1536 + h * 384}'))
        for i in range(2):
            for h in range(2):
                rd.append(I(f'ds_read_b64_tr_b16 {vr(R + 16 + 4 * i + 2 * h, 2)}, v{vA1} offset:{i * 32 + h * 1024}', 'p0rd'))
        a(interleave(rd, self.xloads[6:10], start=2, every=3))
        a(f'v_mov_b32 v{R + 24}, 0')
        st = []
        for s in range(4):
            st.append(I(f'buffer_store_dwordx4 {vr(R + 4 * s, 4)}, v{vA3}, {sr(sWS)}, 0 offen offset:{s * 1024} sc1', 'p0st'))
        st.append(I(f'buffer_store_dwordx4 {vr(R + 16, 4)}, v{R + 36}, {sr(sWS)}, 0 offen sc1', 'p0st'))
        st.append(I(f'buffer_store_dwordx4 {vr(R + 20, 4)}, v{R + 36}, {sr(sWS)}, s23 offen sc1', 'p0st'))
        for va, so in ((vL16, 's16'), (vKVZ, 's16'), (R + 37, '0'), (R + 38, '0')):
            st.append(I(f'buffer_store_dwordx4 {vr(R + 32, 4)}, v{va}, {sr(sWS)}, {so} offen sc1', 'p0st'))
        dbg = self.opt.get('dbg_p0', 0)
        if dbg & 1:
            st = st[:6]
        if dbg & 2:
            st = st[6:]
        if dbg & 8:
            st = [I(g[0].text.replace(' sc1', ''), 'p0st') for g in st]
        dots = [I(f'v_dot2c_f32_bf16 v{R + 24}, v{R + i}, v{ONES}') for i in range(16)]
        side = []
        xl = self.xloads[10:]
        for i in range(max(len(st), len(xl))):
            if i < len(xl):
                side.append(xl[i])
            if i < len(st):
                side.append(st[i])
        a(interleave(dots, side, start=0, every=1))
        a(f'''v_mov_b32 v{R + 25}, v{R + 24}
v_permlane32_swap_b32 v{R + 24}, v{R + 25}
v_add_f32 v{R + 24}, v{R + 24}, v{R + 25}
v_cvt_pk_bf16_f32 v{R + 25}, v{R + 24}, v{R + 24}
v_lshlrev_b32 v{R + 25}, 16, v{R + 25}
v_sub_f32 v{R + 25}, v{R + 24}, v{R + 25}
v_cvt_pk_bf16_f32 v{R + 24}, v{R + 24}, v{R + 25}''')
        if not dbg & 4:
            a(f'buffer_store_dword v{R + 24}, v{vA2}, {sr(sWS)}, 0 offen sc1', 'p0st')
        a(f's_add_u32 s{sNONCE}, s{sNONCE}, 0x9e3779b1')

    def wdma(self, m, c):
        out = []
        for uu in range(2):
            for i in range(2):
                u = 2 * c + uu
                lds = WSLOT[(m, c)] + uu * 8192 + i * 4096
                g = I(f's_add_u32 m0, s{sM0W}, {lds}\ns_add_u32 s{sT1}, s{TA + u}, {WOFF[m] + i * 32 * 3072}')
                g += I(f'buffer_load_dwordx4 v{vA0}, {sr(sWQ)}, s{sT1} offen lds', f'w{m}{c}')
                out.append(g)
        return out

    def ln1(self):
        a = self.a
        a(f'''v_lshrrev_b32 v{vTMP}, 3, v{vLANE}
v_and_b32 v{vTMP2}, 2, v{vTMP}
s_and_b32 s{sT0}, s{sW}, 1
s_lshl_b32 s{sT0}, s{sT0}, 2
v_or_b32 v{vTMP2}, s{sT0}, v{vTMP2}
v_and_b32 v{vA0}, 7, v{vLANE}
v_xor_b32 v{vA0}, v{vA0}, v{vTMP2}
v_mul_u32_u24 v{vTMP2}, 3072, v{vTMP}
v_lshl_add_u32 v{vA0}, v{vA0}, 4, v{vTMP2}
s_mul_i32 s{sT0}, s{sW}, {8 * 3072}
s_lshl_b32 s{sT1}, s{sJ}, 7
s_add_u32 s{sT0}, s{sT0}, s{sT1}
v_add_u32 v{vA0}, s{sT0}, v{vA0}''')
        for u in range(8):
            a(f's_mul_i32 s{TA + u}, s{TA + u}, {64 * 3072 // 128}')
        a(f'''v_and_b32 v{vTMP2}, 7, v{vLANE}
v_xor_b32 v{vTMP}, v{vTMP}, v{vTMP2}
v_lshlrev_b32 v{vA1}, 4, v{vTMP}
v_and_b32 v{vTMP}, 3, v{vLANE}
v_lshl_add_u32 v{vA1}, v{vTMP}, 8, v{vA1}
v_bfe_u32 v{vTMP}, v{vLANE}, 2, 1
v_lshl_add_u32 v{vA1}, v{vTMP}, 12, v{vA1}
v_add_u32 v{vA1}, s{sM0W}, v{vA1}''')
        a(f'''v_lshrrev_b32 v{vTMP}, 4, v{vLANE}
v_and_b32 v{vTMP2}, 15, v{vLANE}
v_xor_b32 v{vTMP2}, v{vTMP2}, v{vTMP}
v_lshlrev_b32 v{vTMP2}, 4, v{vTMP2}
v_lshl_add_u32 v{vA2}, v{vTMP}, 8, v{vTMP2}
v_xor_b32 v{vA3}, 64, v{vA2}''')
        a(f'''v_bfe_u32 v{vTMP2}, v{vLANE}, 2, 2
v_lshl_add_u32 v{vTMP2}, v{vTMP}, 3, v{vTMP2}
v_lshlrev_b32 v{vA6}, 7, v{vTMP2}
v_bfe_u32 v{vTMP2}, v{vLANE}, 3, 2
v_xor_b32 v{vTMP2}, s{sW}, v{vTMP2}
v_lshl_add_u32 v{vA6}, v{vTMP2}, 5, v{vA6}
v_and_b32 v{vTMP2}, 3, v{vLANE}
v_lshl_add_u32 v{vA5}, v{vTMP2}, 3, v{vA6}
v_add_u32 v{vA6}, 0x10000, v{vA5}
v_add_u32 v{vA7}, 0x20000, v{vA5}''')
        main = []
        S, SS, RS, MR, U = 192, 194, 196, 198, 200
        for g in range(2):
            X = T3 + 32 * g
            main += [I(f'v_mov_b32 v{S}, 0\nv_mov_b32 v{S + 1}, 0\nv_mov_b32 v{SS}, 0\nv_mov_b32 v{SS + 1}, 0')]
            for i in range(32):
                main.append(I(f'v_dot2c_f32_bf16 v{S + (i & 1)}, v{X + i}, v{ONES}'))
                main.append(I(f'v_dot2c_f32_bf16 v{SS + (i & 1)}, v{X + i}, v{X + i}'))
            main.append(I(f'v_add_f32 v{S}, v{S}, v{S + 1}\nv_add_f32 v{SS}, v{SS}, v{SS + 1}'))
            for m in ('quad_perm:[1,0,3,2]', 'quad_perm:[2,3,0,1]', 'row_half_mirror'):
                main.append(I(f'v_add_f32_dpp v{S}, v{S}, v{S} {m} row_mask:0xf bank_mask:0xf\nv_add_f32_dpp v{SS}, v{SS}, v{SS} {m} row_mask:0xf bank_mask:0xf'))
            main.append(I(f'''v_mul_f32 v{S}, 0x{f2u(1 / 512):x}, v{S}
v_mul_f32 v{SS}, 0x{f2u(1 / 512):x}, v{SS}
v_fma_f32 v{SS}, -v{S}, v{S}, v{SS}
v_max_f32 v{SS}, 0, v{SS}
v_add_f32 v{SS}, 0x{f2u(1e-5):x}, v{SS}
v_rsq_f32 v{RS}, v{SS}
v_mul_f32 v{MR}, -v{S}, v{RS}'''.replace('v_mul_f32 v%d, -v' % MR, 'v_mul_f32_e64 v%d, -v' % MR)))
            if g == 0:
                main.append(waitlg('p0rd') + I('s_barrier'))
            for i in range(8):
                for d in range(4):
                    x = X + 4 * i + d
                    u = U + 2 * (d & 1)
                    main.append(I(f'v_lshlrev_b32 v{u}, 16, v{x}\nv_and_b32 v{u + 1}, 0xffff0000, v{x}'))
                    main.append(I(f'v_pk_fma_f32 {vr(u, 2)}, {vr(u, 2)}, {vr(RS, 2)}, {vr(MR, 2)} op_sel_hi:[1,0,0]\nv_cvt_pk_bf16_f32 v{x}, v{u}, v{u + 1}'))
                main.append(I(f'ds_write_b128 v{vA1}, {vr(X + 4 * i, 4)} offset:{L_XN + i * 8192 + g * 128}', 'xnw'))
        side = []
        for m, c in [('k', 0), ('k', 1), ('k', 2), ('k', 3), ('v', 0), ('v', 1)]:
            side += self.wdma(m, c)
        a(interleave(main, side, start=0, every=len(main) / 25.0))
        a(self.stamp('ln1'))

    def phi(self, acc, dst):
        g = []
        t = 80
        for i in range(16):
            g.append(I(f'v_fmamk_f32 v{t + i}, v{acc + i}, 0x{f2u(LOG2E):x}, v{vNEG}'))
            g.append(I(f'v_exp_f32_e64 v{t + i}, v{t + i} clamp'))
            g.append(I(f'v_max_f32 v{acc + i}, v{acc + i}, v{EPS4}'))
            g.append(I(f'v_add_f32 v{acc + i}, v{acc + i}, v{t + i}'))
            if i & 1:
                g.append(I(f'v_cvt_pk_bf16_f32 v{dst + (i >> 1)}, v{acc + i - 1}, v{acc + i}'))
        return g

    def p1(self):
        a = self.a
        PK, VF, KV, Z = 96, 104, 112, 116

        def reads(m, s):
            c, sl = s >> 2, s & 3
            adr = WSLOT[(m, c)] + sl * 4096
            base, off = vA5 + (adr >> 16), adr & 0xffff
            wf = BR + 4 * (s & 3)
            g = [I(f'ds_read_b64_tr_b16 {vr(wf, 2)}, v{base} offset:{off}', f'r{m}{s}'),
                 I(f'ds_read_b64_tr_b16 {vr(wf + 2, 2)}, v{base} offset:{off + 512}', f'r{m}{s}')]
            if m == 'k':
                for tt in range(4):
                    g.append(I(f'ds_read_b128 {ar((4 * s + tt) * 4, 4)}, v{vA2 + (s & 1)} offset:{L_XN + (4 * s + tt) * 1024}', f'r{m}{s}'))
            return g

        def mf(m, s):
            acc = {'k': ACC0, 'v': ACC1, 'q': ACC0}[m]
            wf = vr(BR + 4 * (s & 3), 4)
            g = []
            for tt in range(4):
                x = ar((4 * s + tt) * 4, 4)
                c = vr(acc + 4 * tt, 4) if s else ('0' if m == 'v' else vr(EPS4, 4))
                ab = f'{wf}, {x}' if m == 'q' else f'{x}, {wf}'
                g.append(I(f'v_mfma_f32_16x16x32_bf16 {vr(acc + 4 * tt, 4)}, {ab}, {c}'))
            return g

        def sync(m, c):
            return waitvm(f'w{m}{c}') + I('s_barrier')

        after_sync = {('k', 2): self.wdma('v', 2) + self.wdma('v', 3), ('k', 3): self.wdma('q', 0) + self.wdma('q', 1),
                      ('v', 0): self.wdma('q', 2) + self.wdma('q', 3)}

        def run(seq, extra):
            pend = []
            for n, (m, s) in enumerate(seq):
                a(waitlg(f'r{m}{s}'))
                side = []
                if n + 2 < len(seq):
                    m2, s2 = seq[n + 2]
                    if s2 % 4 == 0:
                        a(sync(m2, s2 >> 2))
                        pend += after_sync.get((m2, s2 >> 2), [])
                    side += reads(m2, s2)
                fill = extra.get(n, [])
                dma = [pend.pop(0) for _ in range(min(2, len(pend)))]
                side = side + dma + fill
                a(interleave(mf(m, s), side, start=0, every=4.0 / max(1, len(side))))
            assert not pend

        a(waitlg('xnw'))
        a(sync('k', 0))
        skip = self.label('L_nf')
        a(f's_cmp_lg_u32 s{sW}, 0\ns_cbranch_scc1 {skip}')
        a(cond_begin())
        a(f's_lshl_b32 s{sT0}, s2, 2\ns_add_u32 s{sT0}, s{sT0}, {F_P0}\nv_mov_b32 v{vTMP}, s{sNONCE}\nv_mov_b32 v{vTMP2}, 0\n'
          f's_mov_b64 exec, 1\nbuffer_store_dword v{vTMP}, v{vTMP2}, {sr(sWS)}, s{sT0} offen sc1\ns_mov_b64 exec, -1')
        a(cond_end())
        a(f'{skip}:')
        for g in reads('k', 0) + reads('k', 1):
            a(g)
        seq = [('k', s) for s in range(16)] + [('v', s) for s in range(16)]
        ph = self.phi(ACC0, PK)
        extra = {}
        per = 6
        for n in range(12):
            extra[18 + n] = ph[n * per:(n + 1) * per]
        extra[30] = [I(f'v_mfma_f32_16x16x32_bf16 {vr(Z, 4)}, {vr(PK, 4)}, {vr(ONES, 4)}, 0'),
                     I(f'v_mfma_f32_16x16x32_bf16 {vr(Z, 4)}, {vr(PK + 4, 4)}, {vr(ONES, 4)}, {vr(Z, 4)}')]
        run(seq, extra)
        a(self.stamp('vdone'))
        for r in range(4):
            a(f'v_min_u32 v{Z + r}, -2, v{Z + r}')
        a(f'buffer_store_dwordx4 {vr(Z, 4)}, v{vKVZ}, {sr(sWS)}, s16 offen sc1')
        for i in range(8):
            a(f'v_cvt_pk_bf16_f32 v{VF + i}, v{ACC1 + 2 * i}, v{ACC1 + 2 * i + 1}')
        a(f'v_mfma_f32_16x16x32_bf16 {vr(KV, 4)}, {vr(PK, 4)}, {vr(VF, 4)}, 0')
        a(f'v_mfma_f32_16x16x32_bf16 {vr(KV, 4)}, {vr(PK + 4, 4)}, {vr(VF + 4, 4)}, {vr(KV, 4)}')
        for r in range(4):
            a(f'v_min_u32 v{KV + r}, -2, v{KV + r}')
        a(f'buffer_store_dwordx4 {vr(KV, 4)}, v{vL16}, {sr(sWS)}, s16 offen sc1')
        a(f's_movk_i32 s{sT0}, {F_P0}\nbuffer_load_dwordx4 {vr(VF, 4)}, v{vL16}, {sr(sWS)}, s{sT0} offen sc1')
        a(sync('q', 0))
        for g in reads('q', 0) + reads('q', 1):
            a(g)
        tabs = []
        for u in range(8):
            tabs.append(I(f's_xor_b32 s{sT0}, s{sROT}, {u}\ns_lshl_b32 s{TA + u}, s{sT0}, 11\ns_lshl_b32 s{TB + u}, s{sT0}, 12'))
        run([('q', s) for s in range(16)], {2 + u: [tabs[u]] for u in range(8)})
        a('s_barrier')
        a(self.stamp('qdone'))
        ok, again = self.label('L_ok'), self.label('L_again')

        def chk():
            return (f'v_cmp_ne_u32 vcc, s{sNONCE}, v{VF}\nv_cmp_ne_u32 s[{sT0}:{sT1}], s{sNONCE}, v{VF + 1}\ns_or_b64 vcc, vcc, s[{sT0}:{sT1}]\n'
                    f'v_cmp_ne_u32 s[{sT0}:{sT1}], s{sNONCE}, v{VF + 2}\ns_or_b64 vcc, vcc, s[{sT0}:{sT1}]\n'
                    f'v_cmp_ne_u32 s[{sT0}:{sT1}], s{sNONCE}, v{VF + 3}\ns_or_b64 vcc, vcc, s[{sT0}:{sT1}]')
        a(chk())
        a(f's_cbranch_scc0 {ok}')
        a(cond_begin())
        a(f'{again}:\ns_movk_i32 s{sT2}, {F_P0}\nbuffer_load_dwordx4 {vr(VF, 4)}, v{vL16}, {sr(sWS)}, s{sT2} offen sc1')
        a(self.timeout())
        a('s_waitcnt vmcnt(0)')
        a(chk())
        a(f's_cbranch_scc1 {again}')
        a(cond_end())
        a(f'{ok}:')

    def gather(self, n, sbase, dst):
        a = self.a
        R = 192
        again, ok = self.label('L_again'), self.label('L_ok')
        a(f'{again}:')
        for i in range(n):
            if i % 2 == 0:
                a(f's_add_u32 s{sT2}, s{sbase}, {i * SLOT}')
            off = (i % 2) * SLOT
            a(f'buffer_load_dwordx4 {vr(R + 8 * i, 4)}, v{vL16}, {sr(sWS)}, s{sT2} offen offset:{off} sc1')
            a(f'buffer_load_dwordx4 {vr(R + 8 * i + 4, 4)}, v{vKVZ}, {sr(sWS)}, s{sT2} offen offset:{off} sc1')
        a(self.timeout())
        for i in range(1, n):
            for p in range(4):
                src = vr(R + 2 * p, 2) if i == 1 else vr(dst + 2 * p, 2)
                a(f'v_pk_add_f32 {vr(dst + 2 * p, 2)}, {src}, {vr(R + 8 * i + 2 * p, 2)}')
        a(f'v_cmp_u_f32 vcc, v{dst}, v{dst + 1}')
        for p in range(1, 4):
            a(f'v_cmp_u_f32 s[{sT0}:{sT1}], v{dst + 2 * p}, v{dst + 2 * p + 1}\ns_or_b64 vcc, vcc, s[{sT0}:{sT1}]')
        a(f's_cbranch_scc0 {ok}')
        a(f'v_max_u32 v{vTMP}, v{R}, v{R + 1}')
        for i in range(1, 4 * n):
            a(f'v_max3_u32 v{vTMP}, v{vTMP}, v{R + 2 * i}, v{R + 2 * i + 1}')
        a(f'v_cmp_eq_u32 vcc, -1, v{vTMP}\ns_cbranch_vccnz {again}')
        a(f'{ok}:')

    def frag_loads(self, kind):
        out = []
        if kind == 'wo':
            for s in range(16):
                out.append(I(f'buffer_load_dwordx4 {vr(T3 + 4 * s, 4)}, v{vA0}, {sr(sWS)}, s{TA + (s >> 1)} offen offset:{(s & 1) * 1024} sc1', 'wo'))
        elif kind in ('t0', 't1', 't2'):
            p = int(kind[1])
            for s in range(32):
                d = ar(128 * p + 4 * s, 4) if p < 2 else vr(T3 + 4 * s, 4)
                out.append(I(f'buffer_load_dwordx4 {d}, v{vA1 + p}, {sr(sWS)}, s{TB + (s >> 2)} offen offset:{(s & 3) * 1024} sc1', kind))
            out.append(I(f's_mov_b32 s{sT0}, 0x8000\nbuffer_load_dwordx4 {vr(EXT + 4 * p, 4)}, v{vA1 + p}, {sr(sWS)}, s{sT0} offen sc1', kind))
        elif kind == 'wd':
            for s in range(43):
                if s < 16:
                    so = f's{TA + (s >> 1)}'
                    pre = ''
                elif s < 32:
                    so = f's{sT0}'
                    pre = f's_add_u32 s{sT0}, s{TA + ((s & 15) >> 1)}, 16384\n'
                else:
                    so = f's{sT0}'
                    pre = f's_mov_b32 s{sT0}, {(s & ~1) * 1024}\n'
                out.append(I(f'{pre}buffer_load_dwordx4 {ar(4 * s, 4)}, v{vA0}, {sr(sWS)}, {so} offen offset:{(s & 1) * 1024} sc1', 'wd'))
        return out

    def blk_dma(self, ldsbase, u, halves, tag, va, extra=0):
        g = I(f's_add_u32 m0, s{sM0W2}, {ldsbase + u * 8192}')
        so = f's{TC + u}'
        if extra:
            g += I(f's_add_u32 s{sT0}, s{TC + u}, {extra}')
            so = f's{sT0}'
        for h in halves:
            g += I(f'buffer_load_dwordx4 v{va}, {sr(sWS)}, {so} offen offset:{h * 1024} sc1 lds', tag)
        return g

    def attn(self):
        a = self.a
        PQ, KV = 96, 112
        skip = self.label('L_ne')
        a(f's_or_b32 s{sT0}, s2, s{sW}\ns_cbranch_scc1 {skip}')
        a(cond_begin())
        a(f'v_mov_b32 v{vTMP}, s{sNONCE}\nv_mov_b32 v{vTMP2}, {EPOCH}\ns_mov_b64 exec, 1\nbuffer_store_dword v{vTMP}, v{vTMP2}, {sr(sWS)}, 0 offen sc1\ns_mov_b64 exec, -1')
        a(cond_end())
        a(f'{skip}:')
        skip = self.label('L_nr')
        a(f's_cmp_eq_u32 s19, {OOB}\ns_cbranch_scc1 {skip}')
        a(cond_begin())
        self.gather(8, 17, KV)
        for r in range(8):
            a(f'v_min_u32 v{KV + r}, -2, v{KV + r}')
        a(f'buffer_store_dwordx4 {vr(KV, 4)}, v{vL16}, {sr(sWS)}, s19 offen sc1')
        a(f'buffer_store_dwordx4 {vr(KV + 4, 4)}, v{vKVZ}, {sr(sWS)}, s19 offen sc1')
        a(cond_end())
        a(f'{skip}:')
        a(self.stamp('hop1'))
        a(f'''s_mov_b32 s20, s18
s_lshl_b32 s{sT0}, s{sJ}, 2
s_add_u32 s21, s{sT0}, s{sW}
s_lshl_b32 s{sT1}, s21, 14
s_add_u32 s{sT1}, s{sT1}, {WT_O}
v_add_u32 v{vA0}, s{sT1}, v{vL16}
s_mul_i32 s{sT1}, s21, {33 * 1024}
s_add_u32 s{sT1}, s{sT1}, {WT_GU}
v_add_u32 v{vA1}, s{sT1}, v{vL16}
v_add_u32 v{vA2}, {32 * 33 * 1024}, v{vA1}
s_lshl_b32 s22, s{sW}, 3
s_add_u32 s22, s22, s{sJ}
s_mul_i32 s{sT1}, s22, {33 * 1024}
s_add_u32 s{sT1}, s{sT1}, {WT_GU + 64 * 33 * 1024}
s_cmp_lt_u32 s22, 22
s_cselect_b32 s{sT1}, s{sT1}, {OOB}
v_add_u32 v{vA3}, s{sT1}, v{vL16}
v_and_b32 v{vTMP}, 15, v{vLANE}
v_lshlrev_b32 v{vTMP}, 10, v{vTMP}
v_lshrrev_b32 v{vTMP2}, 4, v{vLANE}
v_lshl_add_u32 v{vTMP}, v{vTMP2}, 3, v{vTMP}
s_lshl_b32 s{sT0}, s{sG}, 16
s_lshl_b32 s{sT1}, s21, 5
s_add_u32 s{sT1}, s{sT1}, s{sT0}
v_add_u32 v{vA4}, s{sT1}, v{vTMP}
s_add_u32 s{sT0}, s{sT0}, s{sM0W2}
s_add_u32 s{sT0}, s{sT0}, {OBUF}
v_add_u32 v{vA5}, s{sT0}, v{vL16}''')
        for u in range(8):
            a(f's_lshl_b32 s{TC + u}, s{TB + u}, 1')
        XR = 104
        side = self.frag_loads('wo') if not self.opt.get('nowo') else []
        for tt in range(4):
            side.append(I(f's_mov_b32 s{sT0}, {tt * 16384}\nbuffer_load_dwordx2 {vr(XR + 2 * tt, 2)}, v{vA4}, {sr(sX)}, s{sT0} offen'))
        a(interleave(self.phi(ACC0, PQ), side, start=0, every=3.5))
        a(f'''v_lshrrev_b32 v{vTMP}, 5, v{vLANE}
v_lshlrev_b32 v{vTMP}, 11, v{vTMP}
v_bfe_u32 v{vTMP2}, v{vLANE}, 4, 1
v_lshl_add_u32 v{vTMP}, v{vTMP2}, 9, v{vTMP}
v_and_b32 v{vTMP2}, 15, v{vLANE}
v_lshl_add_u32 v{vA6}, v{vTMP2}, 4, v{vTMP}
v_add_u32 v{vA7}, 0x10000, v{vA6}''')
        a(self.stamp('phiq'))
        self.gather(4, 20, KV)
        a(self.stamp('hop2'))
        AK, NUM, DEN, X = 120, 48, 64, 80
        for i in range(4):
            a(f'v_cvt_pk_bf16_f32 v{AK + i}, v{KV + 2 * i}, v{KV + 2 * i + 1}')
        for tt in range(4):
            a(f'v_mfma_f32_16x16x16_bf16 {vr(DEN + 4 * tt, 4)}, {vr(AK + 2, 2)}, {vr(PQ + 2 * tt, 2)}, {vr(EPS4, 4)}')
        for tt in range(4):
            a(f'v_mfma_f32_16x16x16_bf16 {vr(NUM + 4 * tt, 4)}, {vr(AK, 2)}, {vr(PQ + 2 * tt, 2)}, 0')
        a(f's_lshl_b32 s23, s{sJ}, 13')
        for tt in range(4):
            a(f'v_rcp_f32 v{DEN + 4 * tt}, v{DEN + 4 * tt}')
        for hh in range(2):
            for t in range(2):
                tt = 2 * hh + t
                for p in range(2):
                    n = NUM + 4 * tt + 2 * p
                    a(f'v_pk_mul_f32 {vr(n, 2)}, {vr(n, 2)}, {vr(DEN + 4 * tt, 2)} op_sel_hi:[1,0]')
                    a(f'v_cvt_pk_bf16_f32 v{X + 4 * hh + 2 * t + p}, v{n}, v{n + 1}')
            a(f'v_permlane16_swap_b32 v{X + 4 * hh}, v{X + 4 * hh + 2}\nv_permlane16_swap_b32 v{X + 4 * hh + 1}, v{X + 4 * hh + 3}')
            a(f'buffer_store_dwordx4 {vr(X + 4 * hh, 4)}, v{vA5}, {sr(sWS)}, s23 offen offset:{hh * 1024} sc1', 'ost')
        a(self.stamp('ost'))
        self.pre = self.frag_loads('t0') + self.frag_loads('t1')
        n0 = self.opt.get('o_n0', 0)
        self.pre = self.pre[n0:]
        n1, n2 = self.opt.get('o_n1', 8), self.opt.get('o_n2', 8)
        for g in self.pre[:n1]:
            a(g)
        for tt in range(4):
            for p in range(2):
                a(f'v_lshlrev_b32 v{HACC + 4 * tt + 2 * p}, 16, v{XR + 2 * tt + p}\nv_and_b32 v{HACC + 4 * tt + 2 * p + 1}, 0xffff0000, v{XR + 2 * tt + p}')
        a(waitvm('ost'))
        a(self.stamp('oack'))
        a(self.flag_set(0))
        for g in self.pre[n1:n1 + n2]:
            a(g)
        self.pre = self.pre[n1 + n2:]
        a(self.flag_load(0, vTMP))
        a(self.flag_check(0, vTMP))
        a(self.stamp('oflag'))

    def gemm16(self, steps, aop, pre_sync, side_at, ring0):
        a = self.a
        LA = 3

        def reads(n):
            vb, off = steps[n]
            return [I(f'ds_read_b128 {vr(32 + 4 * ((4 * (n + ring0) + tt) & 15), 4)}, v{vb} offset:{off + (tt >> 1) * 1024 + (tt & 1) * 256}', f'g{n + ring0}') for tt in range(4)]
        for n in range(min(LA, len(steps))):
            a(pre_sync.get(n, []))
            for g in reads(n):
                a(g)
        for n in range(len(steps)):
            a(waitlg(f'g{n + ring0}'))
            side = []
            if n + LA < len(steps):
                a(pre_sync.get(n + LA, []))
                side = reads(n + LA)
            mf = [I(f'v_mfma_f32_16x16x32_bf16 {vr(HACC + 4 * tt, 4)}, {aop(n)}, {vr(32 + 4 * ((4 * (n + ring0) + tt) & 15), 4)}, {vr(HACC + 4 * tt, 4)}') for tt in range(4)]
            a(interleave(mf, side, start=0, every=1))
            for g in side_at.get(n, []):
                a(g)

    def p2(self):
        a = self.a
        for u in range(8):
            a(self.blk_dma(L_O, u, (0, 1), f'o{u >> 1}', vA5))
        sync = {4 * c: waitvm(f'o{c}') + I('s_barrier') for c in range(4)}
        sync[0] += self.stamp('o0')
        n = self.opt.get('p2_n', 12)
        side = {4 + i: [self.pre.pop(0)] for i in range(n)}
        self.gemm16([(vA7, s * 4096) for s in range(16)], lambda s: vr(T3 + 4 * s, 4), sync, side, 0)
        a(self.stamp('p2mm'))
        X, S, SS, U = 80, 64, 68, 72
        a(f'v_add_u32 v{vA5}, {HBUF - OBUF}, v{vA5}')
        for hh in range(2):
            for t in range(2):
                for p in range(2):
                    h = HACC + 4 * (2 * hh + t) + 2 * p
                    a(f'v_cvt_pk_bf16_f32 v{X + 4 * hh + 2 * t + p}, v{h}, v{h + 1}')
            a(f'v_permlane16_swap_b32 v{X + 4 * hh}, v{X + 4 * hh + 2}\nv_permlane16_swap_b32 v{X + 4 * hh + 1}, v{X + 4 * hh + 3}')
            a(f'buffer_store_dwordx4 {vr(X + 4 * hh, 4)}, v{vA5}, {sr(sWS)}, s23 offen offset:{hh * 1024} sc1', 'hst')
        for tt in range(4):
            h = HACC + 4 * tt
            a(f'''v_pk_add_f32 {vr(U, 2)}, {vr(h, 2)}, {vr(h + 2, 2)}
v_pk_mul_f32 {vr(U + 2, 2)}, {vr(h, 2)}, {vr(h, 2)}
v_pk_fma_f32 {vr(U + 2, 2)}, {vr(h + 2, 2)}, {vr(h + 2, 2)}, {vr(U + 2, 2)}
v_add_f32 v{S + tt}, v{U}, v{U + 1}
v_add_f32 v{SS + tt}, v{U + 2}, v{U + 3}''')
        a(f'''s_lshl_b32 s{sT0}, s{sG}, 2
s_add_u32 s{sT0}, s{sT0}, s{sW}
s_lshl_b32 s20, s{sT0}, 12
s_add_u32 s20, s20, {STATS}
s_lshl_b32 s{sT0}, s{sJ}, 9
s_add_u32 s{sT0}, s{sT0}, s20
v_lshlrev_b32 v{vA4}, 3, v{vLANE}''')
        for b in (S, SS):
            a(f'v_permlane16_swap_b32 v{b}, v{b + 1}\nv_permlane16_swap_b32 v{b + 2}, v{b + 3}')
        for b in (S, SS):
            a(f'v_add_f32 v{b}, v{b}, v{b + 1}\nv_add_f32 v{b + 2}, v{b + 2}, v{b + 3}')
        for b in (S, SS):
            a(f'v_permlane32_swap_b32 v{b}, v{b + 2}')
        a(f'v_add_f32 v{U}, v{S}, v{S + 2}\nv_add_f32 v{U + 1}, v{SS}, v{SS + 2}')
        a(f'buffer_store_dwordx2 {vr(U, 2)}, v{vA4}, {sr(sWS)}, s{sT0} offen sc1', 'hst')
        a(self.stamp('hst'))
        n1 = self.opt.get('h_n1', 10)
        n2 = self.opt.get('h_n2', 10)
        for g in self.pre[:n1]:
            a(g)
        a(waitvm('hst'))
        a(self.stamp('hack'))
        a(self.flag_set(1))
        for g in self.pre[n1:n1 + n2]:
            a(g)
        self.pre = self.pre[n1 + n2:]
        a(f's_mul_i32 s{sT1}, s21, {43 * 1024}\ns_add_u32 s{sT1}, s{sT1}, {WT_D}\nv_add_u32 v{vA0}, s{sT1}, v{vL16}')
        a(self.flag_load(1, vTMP))
        a(self.flag_check(1, vTMP))
        a(self.stamp('hflag'))

    def epilogue(self, n):
        acc = (ACC0, ACC1)[n & 1]
        hh, p = n & 1, n >> 1
        o = OUTR + 4 * (n & 1)
        g = []
        for i0 in range(0, 8, 2):
            for i in (i0, i0 + 1):
                g.append(I(f'v_mul_f32 v{acc + 8 + i}, v{acc + i}, v{acc + 8 + i}'))
                g.append(I(f'v_mul_f32 v{acc + i}, v{acc + i}, v{vC1 + hh}'))
            for i in (i0, i0 + 1):
                g.append(I(f'v_exp_f32 v{acc + i}, v{acc + i}'))
            for i in (i0, i0 + 1):
                g.append(I(f'v_fma_f32 v{acc + i}, v{acc + i}, v{vQ + hh}, v{vQ + hh}'))
            for i in (i0, i0 + 1):
                g.append(I(f'v_rcp_f32 v{acc + i}, v{acc + i}'))
            for i in (i0, i0 + 1):
                g.append(I(f'v_mul_f32 v{acc + i}, v{acc + i}, v{acc + 8 + i}'))
            g.append(I(f'v_cvt_pk_bf16_f32 v{o + (i0 >> 1)}, v{acc + i0}, v{acc + i0 + 1}'))
        va, so = (vL16, f's{20 + p}') if p < 2 else (vA1, '0')
        g.append(I(f'buffer_store_dwordx4 {vr(o, 4)}, v{va}, {sr(sWS)}, {so} offen offset:{hh * 1024} sc1', f'ast{n}'))
        return g

    def p3(self):
        a = self.a
        ST = ACC1
        for u in range(8):
            a(self.blk_dma(L_H, u, (0,), f'h0{(0, 0, 1, 1, 2, 2, 2, 2)[u]}', vA5))
        for j in range(8):
            a(f'buffer_load_dwordx2 {vr(ST + 2 * j, 2)}, v{vA4}, {sr(sWS)}, s20 offen offset:{j * 512} sc1')
        h1 = [self.blk_dma(L_H, u, (1,), 'h1', vA5) for u in range(8)]
        setup = [I(x) for x in f'''s_mul_i32 s{sT2}, s{sG}, {172 * 1024}
s_add_u32 s{sT2}, s{sT2}, {ACT}
s_lshl_b32 s20, s21, 11
s_add_u32 s20, s20, s{sT2}
s_add_u32 s21, s20, 65536
s_lshl_b32 s{sT3}, s22, 11
s_add_u32 s{sT3}, s{sT3}, s{sT2}
s_add_u32 s{sT3}, s{sT3}, 131072'''.split('\n')]
        setup.append(I(f's_cmp_lt_u32 s22, 22\ns_cselect_b32 s22, s{sT3}, {OOB}\nv_add_u32 v{vA1}, s22, v{vL16}'))
        setup.append(I(f's_lshr_b32 s{sT3}, s{sM0W}, 1\ns_add_u32 s{sT3}, s{sT3}, {L_ST}\nv_add_u32 v{vA4}, s{sT3}, v{vA4}'))
        setup.append(I(f'v_and_b32 v{vKVZ}, 31, v{vLANE}\nv_lshlrev_b32 v{vKVZ}, 3, v{vKVZ}\nv_add_u32 v{vKVZ}, {L_ST}, v{vKVZ}'))
        for g in setup:
            a(g)
        st1 = []
        for j in range(1, 8):
            st1.append(I(f'v_add_f32 v{ST}, v{ST}, v{ST + 2 * j}'))
            st1.append(I(f'v_add_f32 v{ST + 1}, v{ST + 1}, v{ST + 2 * j + 1}'))
        st1.append(I(f'ds_write_b64 v{vA4}, {vr(ST, 2)}', 'stw'))
        st2 = []
        for hh in range(2):
            for w in range(4):
                st2.append(I(f'ds_read_b64 {vr(ST + 8 * hh + 2 * w, 2)}, v{vKVZ} offset:{w * 512 + hh * 256}'))
        st3 = []
        for hh in range(2):
            b = ST + 8 * hh
            txt = f'''v_add_f32 v{b}, v{b}, v{b + 2}
v_add_f32 v{b + 1}, v{b + 1}, v{b + 3}
v_add_f32 v{b + 4}, v{b + 4}, v{b + 6}
v_add_f32 v{b + 5}, v{b + 5}, v{b + 7}
v_add_f32 v{b}, v{b}, v{b + 4}
v_add_f32 v{b + 1}, v{b + 1}, v{b + 5}
v_mul_f32 v{b}, 0x{f2u(-1 / 512):x}, v{b}
v_mul_f32 v{b + 1}, 0x{f2u(1 / 512):x}, v{b + 1}
v_cvt_pk_bf16_f32 v{BEXT + 4 * hh}, v{b}, v{b}
v_fma_f32 v{b + 1}, -v{b}, v{b}, v{b + 1}
v_mov_b32 v{BEXT + 4 * hh + 1}, v{BEXT + 4 * hh}
v_max_f32 v{b + 1}, 0, v{b + 1}
v_mov_b32 v{BEXT + 4 * hh + 2}, v{BEXT + 4 * hh}
v_add_f32 v{vQ + hh}, 0x{f2u(1e-5):x}, v{b + 1}
v_mov_b32 v{BEXT + 4 * hh + 3}, v{BEXT + 4 * hh}
v_rsq_f32 v{b}, v{vQ + hh}
v_mul_f32 v{vC1 + hh}, 0x{f2u(-LOG2E):x}, v{b}'''
            st3 += [I(x) for x in txt.split('\n')]

        LA = 6
        NU = 6

        def rd(q):
            n, s = divmod(q, 32)
            return I(f'ds_read_b128 {vr(BR + 4 * (q & 7), 4)}, v{vL16} offset:{L_H + s * 2048 + (n & 1) * 1024}', f'b{q}')

        presync = {0: waitvm('h00') + I('s_barrier') + self.stamp('h0'), 8: waitvm('h01') + I('s_barrier'), 16: waitvm('h02') + I('s_barrier'),
                   32: waitvm('h1') + I('s_barrier')}
        fill = {}

        def put(n, g0, groups, per):
            k = 0
            gap = g0
            acc = 0.0
            while k < len(groups):
                acc += per
                while acc >= 1 - 1e-9 and k < len(groups):
                    fill.setdefault((n + gap // 33, gap % 33), []).append(groups[k])
                    k += 1
                    acc -= 1
                gap += 1
        put(0, 0, h1, 0.5)
        put(0, 11, st1, 3)
        fill.setdefault((0, 17), []).append(waitlg('stw') + I('s_barrier'))
        put(0, 17, st2, 4)
        put(0, 21, st3, 3.4)
        assert len(self.pre) <= 33
        rest = self.pre + self.frag_loads('t2')
        put(0, 16, rest, len(rest) / 62.0)
        wd = self.frag_loads('wd')
        put(2, 13, wd[:32], 32 / 53.0)
        put(4, 0, wd[32:], 0.4)
        for n in range(1, NU):
            put(n, 3, self.epilogue(n - 1), 3.2)
        fill.setdefault((3, 14), []).append(waitvm('ast1') + self.flag_set(2))
        FR = EXT
        fill.setdefault((4, 30), []).append(self.flag_load(2, FR))
        fill.setdefault((2, 0), []).append(I(f's_mul_i32 s{sT2}, s{sG}, {172 * 1024}\ns_add_u32 s{sT2}, s{sT2}, s{sM0W2}\ns_add_u32 s{sT2}, s{sT2}, {ACT}\nv_add_u32 v{vA5}, s{sT2}, v{vL16}'))
        fill.setdefault((5, 14), []).append(waitvm('ast3') + self.flag_set(3) + self.flag_check(2, FR))
        put(5, 15, [self.blk_dma(L_O, u, (0, 1), 'a1', vA5) for u in range(8)], 0.5)

        for q in range(LA):
            a(presync.get(q, []))
            a(rd(q))
        for n in range(NU):
            acc = vr((ACC0, ACC1)[n & 1], 16)
            p = n >> 1
            for s in range(33):
                q = 32 * n + s
                if s < 32:
                    if s % 2 == 0:
                        a(waitlg(f'b{q + 1}'))
                    A = ar(128 * p + 4 * s, 4) if p < 2 else vr(T3 + 4 * s, 4)
                    a(f'v_mfma_f32_32x32x16_bf16 {acc}, {A}, {vr(BR + 4 * (q & 7), 4)}, {acc if s else 0}')
                    if q + LA < 32 * NU:
                        a(presync.get(q + LA, []))
                        a(rd(q + LA))
                else:
                    a(f'v_mfma_f32_32x32x16_bf16 {acc}, {vr(EXT + 4 * p, 4)}, {vr(BEXT + 4 * (n & 1), 4)}, {acc}')
                for g in fill.pop((n, s), []):
                    a(g)
            if n < 5:
                a(self.stamp(f'u{n}'))
        assert not fill, fill.keys()
        a('s_barrier')
        a(self.stamp('p3mm'))
        for g in self.epilogue(5):
            a(g)
        a(self.stamp('ep5'))

    def p4(self):
        a = self.a
        FR = EXT
        a(self.flag_load(3, FR))
        d2 = [self.blk_dma(L_H, u, (0, 1), f'a2{u >> 1}', vA5, 65536) for u in range(8)]
        k = self.opt.get('p4_k', 10)
        side = {k: [waitvm('ast5') + self.flag_set(4) + self.flag_check(3, FR)] + d2[:3]}
        for i in range(5):
            side[k + 1 + i] = [d2[3 + i]]
        side[15].append(self.flag_load(4, FR))
        steps = [(vA7, s * 4096) for s in range(16)] + [(vA6, s * 4096) for s in range(16)]
        sync = {0: waitvm('a1') + I('s_barrier') + self.stamp('a1')}
        side[k][0] = side[k][0] + self.stamp('s10')
        for c in range(4):
            sync[16 + 4 * c] = waitvm(f'a2{c}') + I('s_barrier') + (self.stamp('s16') if c == 0 else [])
        a(f'''s_mul_i32 s{sT3}, s{sW}, {16384 - 2048}
s_cmp_lt_u32 s{sW}, 3
s_cselect_b32 s{sT2}, s{sT3}, {OOB}
v_add_u32 v{vA2}, s{sT2}, v{vA5}
s_cmp_lt_u32 s{sW}, 2
s_cselect_b32 s{sT2}, s{sT3}, {OOB}
v_add_u32 v{vA3}, s{sT2}, v{vA5}
s_lshl_b32 s{sT3}, s{sW}, 14''')
        d3 = []
        for j in range(8):
            g = I(f's_add_u32 m0, s{sT3}, {L_O + j * 2048}\ns_mov_b32 s{sT0}, {131072 + j * 2048}')
            for h in range(2):
                g += I(f'buffer_load_dwordx4 v{vA2 if j < 6 else vA3}, {sr(sWS)}, s{sT0} offen offset:{h * 1024} sc1 lds', f'a3{j >> 2}')
            d3.append(g)
        k3 = self.opt.get('p4_k3', 29)
        side[k3] = [self.flag_check(4, FR)] + d3
        self.gemm16(steps, lambda n: ar(4 * n, 4), sync, side, 0)
        a(self.stamp('p4b'))
        order = [0, 4, 8, 1, 5, 9, 2, 6, 10, 3, 7]
        sync = {0: waitvm('a30') + I('s_barrier'), 6: waitvm('a31') + I('s_barrier')}
        a(f'''v_and_b32 v{vTMP}, 31, v{vLANE}
v_lshlrev_b32 v{vTMP}, 10, v{vTMP}
v_lshrrev_b32 v{vTMP2}, 5, v{vLANE}
v_lshl_add_u32 v{vA4}, v{vTMP2}, 4, v{vTMP}
s_lshl_b32 s{sT0}, s{sG}, 16
s_lshl_b32 s{sT1}, s{sJ}, 7
s_add_u32 s{sT0}, s{sT0}, s{sT1}
s_lshl_b32 s{sT1}, s{sW}, 5
s_add_u32 s20, s{sT0}, s{sT1}
s_add_u32 s21, s20, 32768''')
        self.gemm16([(vA7, s * 4096) for s in order], lambda n: ar(4 * (32 + order[n]), 4), sync, {}, 32)
        X = 96
        for hh in range(2):
            for t in range(2):
                for p in range(2):
                    h = HACC + 4 * (2 * hh + t) + 2 * p
                    a(f'v_cvt_pk_bf16_f32 v{X + 4 * hh + 2 * t + p}, v{h}, v{h + 1}')
            a(f'v_permlane16_swap_b32 v{X + 4 * hh}, v{X + 4 * hh + 2}\nv_permlane16_swap_b32 v{X + 4 * hh + 1}, v{X + 4 * hh + 3}')
            a(f'buffer_store_dwordx4 {vr(X + 4 * hh, 4)}, v{vA4}, {sr(sOUT)}, s{20 + hh} offen')
        if self.prof:
            a('s_waitcnt vmcnt(0)')
            a(self.stamp('end'))
            a('s_memrealtime s[20:21]\ns_waitcnt lgkmcnt(0)')
            a(f's_lshl_b32 s{sT0}, s2, 2\ns_add_u32 s{sT0}, s{sT0}, s{sW}\ns_lshl_b32 s{sT0}, s{sT0}, 7\ns_add_u32 s{sT0}, s{sT0}, {PROF}')
            a(f'v_mov_b32 v{vTMP2}, 0\ns_mov_b64 exec, 1')
            vals = ['s3', 's20'] + [f's{STAMP0 + 2 * i}' for i in range(self.nstamp)]
            for i, v in enumerate(vals):
                a(f'v_mov_b32 v{vTMP}, {v}\nbuffer_store_dword v{vTMP}, v{vTMP2}, {sr(sWS)}, s{sT0} offen offset:{4 * i}')

    def build(self):
        self.prologue()
        self.p0()
        self.ln1()
        self.p1()
        self.attn()
        self.p2()
        self.p3()
        self.p4()
        self.a('L_end:\ns_endpgm')
        items = resolve_waits(self.items, True)
        items = pad_hazards(items, True)
        head = open('sequential_preLN__linear_attn_block__swiglu_ffn__prompt.s.ref').read().split('; Override launch')[0]
        txt = head + '; @launch grid=(256,1,1) block=(256,1,1) lds=163840\n'
        txt += f'.amdgcn_target "amdgcn-amd-amdhsa--gfx950"\n.text\n.globl {NAME}\n.p2align 8\n.type {NAME},@function\n{NAME}:\n'
        txt += render(items) + '\n'
        txt += f'''.section .rodata,"a"
.p2align 6
.amdhsa_kernel {NAME}
  .amdhsa_next_free_vgpr 512
  .amdhsa_next_free_sgpr 102
  .amdhsa_accum_offset 256
  .amdhsa_group_segment_fixed_size 0
  .amdhsa_kernarg_size 80
  .amdhsa_user_sgpr_count 2
  .amdhsa_user_sgpr_kernarg_segment_ptr 1
  .amdhsa_system_sgpr_workgroup_id_x 1
.end_amdhsa_kernel
'''
        return txt


if __name__ == '__main__':
    out = sys.argv[1]
    prof = len(sys.argv) > 2 and sys.argv[2] == 'prof'
    opt = {}
    for kv in sys.argv[3:]:
        k, v = kv.split('=')
        opt[k] = int(v)
    g = Gen(prof, opt)
    open(out, 'w').write(g.build())
    open(out + '.stamps', 'w').write(' '.join(g.stamp_names))
```

```python
import re

REG_RE = re.compile(r'^(v|a|s)(?:(\d+)|\[(\d+):(\d+)\])$')


def regs_of(op):
    op = op.strip()
    if op.startswith('-'):
        op = op[1:]
    if op.startswith('abs(') and op.endswith(')'):
        op = op[4:-1]
    if op.startswith('|') and op.endswith('|'):
        op = op[1:-1]
    if op in ('vcc', 'exec', 'm0'):
        return [op]
    if op in ('vcc_lo', 'vcc_hi'):
        return ['vcc']
    if op in ('exec_lo', 'exec_hi'):
        return ['exec']
    m = REG_RE.match(op)
    if not m:
        return []
    if m.group(2) is not None:
        return [m.group(1) + m.group(2)]
    return [m.group(1) + str(i) for i in range(int(m.group(3)), int(m.group(4)) + 1)]


TRANS = ('v_exp_f32', 'v_log_f32', 'v_rcp_f32', 'v_rsq_f32', 'v_sqrt_f32', 'v_sin_f32', 'v_cos_f32')


class Ins:
    __slots__ = ('text', 'mn', 'ops', 'defs', 'uses', 'kind', 'tag', 'passes', 'ab', 'c', 'dpp', 'wide', 'lds')

    def __init__(self, text, tag=None):
        self.text = text
        self.tag = tag
        body = text.split(';')[0].strip()
        parts = body.split(None, 1)
        self.mn = parts[0]
        rest = parts[1] if len(parts) > 1 else ''
        raw = [o.strip() for o in rest.split(',')] if rest else []
        ops = []
        for i, o in enumerate(raw):
            ops.append(o.split()[0] if o else o)
        self.ops = ops
        mn = self.mn
        R = [regs_of(o) for o in ops]
        flat = lambda xs: [r for x in xs for r in x]
        self.defs, self.uses = [], []
        self.passes = 0
        self.ab, self.c = [], []
        self.dpp = ('_dpp' in mn) or ('quad_perm' in body) or ('row_' in body)
        self.wide = False
        self.lds = False
        if mn.startswith('v_mfma'):
            self.kind = 'mfma'
            self.defs = R[0]
            self.ab = R[1] + R[2]
            self.c = R[3]
            self.uses = self.ab + self.c
            self.passes = 8 if '32x32' in mn else 4
        elif mn.startswith('v_cmp'):
            self.kind = 'valu'
            self.defs = R[0]
            self.uses = flat(R[1:])
        elif mn.startswith('v_permlane'):
            self.kind = 'valu'
            self.defs = R[0] + R[1]
            self.uses = R[0] + R[1]
        elif mn.startswith('v_'):
            self.kind = 'valu'
            self.defs = R[0]
            self.uses = flat(R[1:])
            if mn.startswith(('v_fmac', 'v_dot2c', 'v_writelane')) or self.dpp:
                self.uses = self.uses + R[0]
            if mn.startswith(('v_add_co', 'v_addc_co', 'v_sub_co')):
                self.defs = R[0] + R[1]
        elif mn.startswith('ds_read'):
            self.kind = 'ds'
            self.defs = R[0]
            self.uses = flat(R[1:])
        elif mn.startswith('ds_'):
            self.kind = 'ds'
            self.uses = flat(R)
        elif mn.startswith('buffer_load'):
            self.kind = 'vm'
            if re.search(r'\blds\b', body):
                self.lds = True
                self.uses = flat(R) + ['m0']
            else:
                self.defs = R[0]
                self.uses = flat(R[1:])
        elif mn.startswith('buffer_'):
            self.kind = 'vm'
            self.uses = flat(R)
            if mn.startswith('buffer_atomic') and re.search(r'\bsc0\b', body):
                self.defs = R[0]
            self.wide = mn.endswith(('x3', 'x4'))
        elif mn.startswith('global_load'):
            self.kind = 'vm'
            self.defs = R[0]
            self.uses = flat(R[1:])
        elif mn.startswith(('s_load', 's_memtime', 's_memrealtime')):
            self.kind = 'smem'
            self.defs = R[0]
            self.uses = flat(R[1:])
        elif mn.startswith('s_atomic'):
            self.kind = 'smem'
            self.defs = R[0] if 'glc' in body else []
            self.uses = flat(R)
        elif mn.startswith(('s_cmp', 's_bitcmp')):
            self.kind = 'salu'
            self.uses = flat(R)
        elif mn.startswith(('s_cbranch', 's_branch')):
            self.kind = 'branch'
        elif mn in ('s_waitcnt', 's_barrier', 's_nop', 's_endpgm', 's_sleep', 's_setprio'):
            self.kind = 'ctl'
        elif mn.startswith('s_'):
            self.kind = 'salu'
            self.defs = R[0]
            self.uses = flat(R[1:])
            if 'saveexec' in mn:
                self.defs = self.defs + ['exec']
        else:
            raise ValueError('unknown instruction: ' + text)


def I(text, tag=None):
    out = []
    for line in text.split('\n'):
        line = line.strip()
        if not line:
            continue
        if line.endswith(':') or line.startswith('.'):
            out.append(('raw', line))
        else:
            out.append(Ins(line, tag))
    return out


def waitvm(tag):
    return [('waitvm', tag)]


def waitlg(tag):
    return [('waitlg', tag)]


def cond_begin():
    return [('cond_begin',)]


def cond_end():
    return [('cond_end',)]


def cond_else():
    return [('else',)]


def cond_endif():
    return [('endif',)]


def gkind(g):
    ks = {i.kind for i in g if not isinstance(i, tuple)}
    if ks & {'vm', 'ds'}:
        return 'mem'
    if ks & {'valu', 'mfma'}:
        return 'valu'
    return 'salu'


def gcost(g):
    c = 0
    for i in g:
        if isinstance(i, tuple):
            continue
        c += 2 if (i.mn.startswith(TRANS) or i.kind == 'mfma') else 1
    return c


def weave(mf, mem, valu, mem_span=1.0):
    n = len(mf)
    out = []
    mem, valu = list(mem), list(valu)
    span = max(1, int(round(n * mem_span)))
    nm = len(mem)
    slots = [[] for _ in range(n)]
    for k, g in enumerate(mem):
        slots[min(n - 1, (k * span) // nm)].append(g)
    total = sum(gcost(g) for g in valu) + nm
    done = 0
    for i in range(n):
        out += mf[i]
        while valu and gkind(valu[0]) == 'mem':
            g = valu.pop(0)
            out += g
            done += gcost(g)
            break
        for g in slots[i]:
            out += g
            done += 1
        target = total * (i + 1) / n
        while valu and gkind(valu[0]) != 'mem' and done + gcost(valu[0]) / 2.0 <= target:
            g = valu.pop(0)
            out += g
            done += gcost(g)
    for g in valu:
        out += g
    return out


def interleave(main, side, start=0, every=1, per=1):
    out = []
    side = list(side)
    nxt = float(start)
    for i, g in enumerate(main):
        out += g
        while side and i >= nxt - 1e-9:
            for _ in range(per):
                if side:
                    out += side.pop(0)
            nxt += every
    for g in side:
        out += g
    return out


class Q:
    def __init__(self, maxn):
        self.q = []
        self.maxn = maxn

    def copy(self):
        n = Q(self.maxn)
        n.q = list(self.q)
        return n

    def need(self, idx, cond):
        n = sum(1 for e in self.q[idx + 1:] if e['cond'] in cond)
        return min(n, self.maxn)

    def retire_to(self, n, cond):
        kept = 0
        cut = len(self.q)
        while cut > 0:
            e = self.q[cut - 1]
            sure = e['cond'] in cond
            if n == 0:
                break
            if sure and kept == n:
                break
            if sure:
                kept += 1
            cut -= 1
        self.q = self.q[cut:]


def resolve_waits(items, verbose=False):
    out = []
    vm, lg = Q(63), Q(15)
    smem = set()
    cond = [0]
    ncond = 0
    snaps = []
    nauto = 0
    held = []

    def emit_wait(nv, nl):
        s = 's_waitcnt'
        if nv is not None:
            s += f' vmcnt({nv})'
            vm.retire_to(nv, cond)
        if nl is not None:
            s += f' lgkmcnt({nl})'
            lg.retire_to(nl, cond)
            if nl == 0:
                smem.clear()
        out.append(Ins(s))

    for it in items:
        if isinstance(it, tuple):
            if it[0] == 'raw':
                out.append(it)
            elif it[0] == 'cond_begin':
                ncond += 1
                cond.append(ncond)
                snaps.append((vm.copy(), lg.copy(), set(smem)))
            elif it[0] == 'cond_end':
                snap = snaps.pop()
                me = cond.pop()
                for cur, old in ((vm, snap[0]), (lg, snap[1])):
                    cur.q = old.q + [e for e in cur.q if e['cond'] >= me]
                smem |= snap[2]
            elif it[0] == 'else':
                snap = snaps[-1]
                me = cond.pop()
                held.append(([e for e in vm.q], [e for e in lg.q], set(smem)))
                vm.q, lg.q = list(snap[0].q), list(snap[1].q)
                smem.clear()
                smem |= snap[2]
                ncond += 1
                cond.append(ncond)
            elif it[0] == 'endif':
                snaps.pop()
                cond.pop()
                h = held.pop()
                for cur, other in ((vm, h[0]), (lg, h[1])):
                    ids = {id(e) for e in cur.q}
                    merged = [e for e in other if id(e) not in ids] + cur.q
                    merged.sort(key=lambda e: e['n'])
                    cur.q = merged
                smem |= h[2]
            elif it[0] in ('waitvm', 'waitlg'):
                q = vm if it[0] == 'waitvm' else lg
                idxs = [i for i, e in enumerate(q.q) if e['tag'] == it[1]]
                if idxs:
                    n = q.need(idxs[-1], cond)
                    emit_wait(n if q is vm else None, n if q is lg else None)
            continue
        ins = it
        if ins.mn == 's_waitcnt':
            m = re.search(r'vmcnt\((\d+)\)', ins.text)
            if m:
                vm.retire_to(int(m.group(1)), cond)
            m = re.search(r'lgkmcnt\((\d+)\)', ins.text)
            if m:
                lg.retire_to(int(m.group(1)), cond)
                if int(m.group(1)) == 0:
                    smem.clear()
            out.append(ins)
            continue
        touched = set(ins.uses) | set(ins.defs)
        nv = nl = None
        for q, which in ((vm, 0), (lg, 1)):
            t = touched
            if (which == 0 and ins.kind == 'vm') or (which == 1 and ins.kind == 'ds'):
                t = set(ins.uses)
            idxs = [i for i, e in enumerate(q.q) if e['regs'] & t]
            if idxs:
                n = q.need(idxs[-1], cond)
                if which == 0:
                    nv = n
                else:
                    nl = n
        if smem & touched and not (ins.kind == 'smem' and ins.mn.startswith('s_mem')):
            nl = 0
        if nv is not None or nl is not None:
            nauto += 1
            emit_wait(nv, nl)
        out.append(ins)
        if ins.kind == 'vm':
            vm.q.append(dict(regs=set(ins.defs), tag=ins.tag, cond=cond[-1], n=len(out)))
        elif ins.kind == 'ds':
            lg.q.append(dict(regs=set(ins.defs), tag=ins.tag, cond=cond[-1], n=len(out)))
        elif ins.kind == 'smem':
            smem |= set(ins.defs)
    if verbose:
        print('auto waits:', nauto)
    return out


def hazard_need(hist, ins):
    need = 0
    u, d = set(ins.uses), set(ins.defs)
    for p, age in hist:
        req = 0
        pd = set(p.defs)
        if p.kind == 'valu':
            vd = {r for r in pd if r[0] in 'va' and r != 'vcc'}
            sd = pd - vd
            isdot = p.mn.startswith('v_dot')
            if ins.kind == 'mfma' and vd & u:
                req = max(req, 3 if isdot else 2)
            if ins.kind == 'valu':
                if p.mn.startswith(TRANS) and vd & u:
                    req = max(req, 1)
                if (ins.mn.startswith('v_permlane') or ins.dpp) and vd & u:
                    req = max(req, 2)
                if ins.mn.startswith(('v_readlane', 'v_readfirstlane')) and vd & u:
                    req = max(req, 1)
                if sd & u:
                    req = max(req, 4 if ins.mn.startswith(('v_readlane', 'v_writelane')) else 2)
                if isdot and vd & (u | d):
                    if ins.mn == p.mn:
                        srcs = set(regs_of(ins.ops[1])) | set(regs_of(ins.ops[2]))
                        if vd & srcs:
                            req = max(req, 3)
                    else:
                        req = max(req, 3)
            if ins.kind in ('vm', 'ds') and isdot and vd & (u | d):
                req = max(req, 3)
            if ins.kind == 'vm' and sd & u:
                req = max(req, 5)
            if ins.kind in ('salu', 'smem') and sd & u:
                req = max(req, 1)
            if ins.kind == 'branch' and 'vcc' in ins.mn and 'vcc' in sd:
                req = max(req, 1)
        elif p.kind == 'mfma':
            full = 12 if p.passes == 8 else 8
            if ins.kind == 'mfma':
                if pd & set(ins.ab):
                    req = max(req, full)
                if pd & set(ins.c):
                    if not (p.defs == ins.c and p.passes == ins.passes):
                        req = max(req, full - 2)
                elif pd & d and p.passes != ins.passes:
                    req = max(req, full)
            elif ins.kind in ('valu', 'vm', 'ds'):
                if pd & (u | d):
                    req = max(req, full)
                if ins.kind == 'valu' and set(p.c) & d:
                    req = max(req, 7 if p.passes == 8 else 3)
        elif p.kind == 'salu':
            if 'm0' in pd and ins.lds:
                req = max(req, 1)
        elif p.kind == 'vm' and p.wide:
            data = set(regs_of(p.ops[0]))
            if data & d:
                req = max(req, 2)
        need = max(need, req - age)
    return need


def pad_hazards(items, verbose=False):
    H = 14
    saved = {}
    total = 0
    for rnd in range(2):
        out = []
        hist = []
        total = 0
        for it in items:
            if isinstance(it, tuple):
                line = it[1]
                if line.endswith(':'):
                    for h in saved.get(line[:-1], []):
                        hist = hist + h
                out.append(it)
                continue
            n = hazard_need(hist, it)
            if n > 0:
                total += n
                out.append(Ins(f's_nop {n - 1}'))
                hist = [(p, a + n) for p, a in hist if a + n < H]
            out.append(it)
            step = 1
            if it.mn == 's_nop':
                step = int(it.ops[0]) + 1
            hist = [(p, a + step) for p, a in hist if a + step < H]
            if it.kind in ('valu', 'mfma', 'salu', 'vm'):
                hist.append((it, 0))
            if it.kind == 'branch':
                saved.setdefault(it.ops[0], []).append(list(hist))
                if it.mn == 's_branch':
                    hist = []
            if it.mn == 's_endpgm':
                hist = []
    if verbose:
        print('hazard nops:', total)
    return out


def render(items):
    lines = []
    for it in items:
        if isinstance(it, tuple):
            lines.append(it[1])
        else:
            lines.append('    ' + it.text)
    return '\n'.join(lines)
```

```python
import sys, struct
sys.path.insert(0, 'exp')
from asmlib import *

NAME = 'sequential_preLN__linear_attn_block__swiglu_ffn__prompt_kernel'


def f2u(x):
    return struct.unpack('<I', struct.pack('<f', x))[0]


LOG2E = 1.4426950408889634

CNT = 0x0
C_KV = 640
C_K1 = 768
STATS = 0x20000
KVG = 0x40000
KVP = 0x80000
OBUF = 0x200000
HBUF = 0x400000
ACT = 0x600000
PROF = 0x1100000
WS_BYTES = 0x2000000
OOB = 0x40000000
SLOT = 1152

sPOLL, sTMO = 1, 3
sWU = 4
sDM, sH, sSC, sMM = 8, 9, 10, 11
sMSK = 12
sR7, sRG = 14, 15
sKVP, sKVGRP, sKVG, sKVME = 16, 17, 18, 19
sX, sWQ, sWO, sGU, sWD, sOUT, sWS = 24, 28, 32, 36, 40, 44, 48
sW, sG, sJ, sROT = 52, 53, 54, 55
sT0, sT1, sT2, sT3 = 56, 57, 58, 59
sM0W2, sCX, sONE, sCT = 60, 61, 62, 63
TW = 64
sRO13, sCHP, sCHC, sCAP, sMH, sM0W = 64, 65, 66, 67, 68, 69
sRO16, sMG = 72, 73
STAMP0 = 74

vL16 = 1
vA0, vA1, vA2, vA3, vA4, vA5, vA6, vA7 = 2, 3, 4, 5, 6, 7, 8, 9
vLANE, vZ4, vKVZ, vTMP, vTMP2, vNEG = 10, 11, 12, 13, 14, 15
HACC = 16
ACC0, ACC1 = 32, 48
BR = 64
EXT = 96
BEXT = 108
vC1, vQ = 116, 118
OUTR = 120
WOF = 128
ONES, EPS4 = 120, 124
PQ, SEL = 108, 116
CS = {'k': 16, 'v': 20, 'q': 24}
GRAM, SM = 28, 112
PK, PKR, VF, KV, Z = 96, 104, 128, 112, 116
XR, STB = 240, 248
NM, RR, PT = 192, 208, 136
aXS, aWS, aOS = 152, 154, 156
aXF = 162
aSA, aSB = 171, 175
aXR, aZ8, aINI, aH1, aONE, aRP, aH2, aWU = 184, 185, 186, 187, 188, 189, 190, 191


def t2reg(s):
    return 192 + 4 * s if s < 16 else 128 + 4 * (s - 16)


def treg(p, s):
    return ar(128 * p + 4 * s, 4) if p < 2 else vr(t2reg(s), 4)


def thalf(p, s, h):
    return ar(128 * p + 4 * s + 2 * h, 2) if p < 2 else vr(t2reg(s) + 2 * h, 2)


def slot_of(m, u):
    return {'x': u, 'k': 8 + u, 'v': 16 + u if u < 4 else u - 4, 'q': 4 + u, 'o': 12 + u if u < 4 else 4 + u}[m] * 8192


L_ST1 = 11 * 8192
L_O = 65536
GSZ = 12352
GSLOT = [131072, 131072 + GSZ] + [i * GSZ for i in range(5)]
L_SC = 5 * GSZ
L_WD = 131072
WOFF = {'q': 0, 'k': 1024, 'v': 2048}
U0 = [min(3 * m, 2 * m + 11) for m in range(16)]


def vr(b, n):
    return f'v[{b}:{b + n - 1}]'


def ar(b, n):
    return f'a[{b}:{b + n - 1}]'


def sr(b, n=4):
    return f's[{b}:{b + n - 1}]'


def each(txt, tag=None):
    return [I(x, tag) for x in txt.split('\n') if x.strip()]


class Gen:
    def __init__(self, prof=False, opt=None):
        self.items = []
        self.prof = prof
        self.nstamp = 0
        self.stamp_names = []
        self.nlabel = 0
        self.opt = opt or {}
        sets = {0: 'start karg d0 kdone kvpub qdone hop2 oflag p2mm hflag u1 p3mm p4b end',
                1: 'start kvpub q0 qdone epq hint2 hop2 ost word oack oflag o0 p2mm end',
                2: 'start p2mm hst hack gdone hflag h0 u0 u1 u2 u3 u4 p3mm end',
                3: 'start karg d0 it2 it4 it6 it8 kdone vm vdone kvpub q0 qdone end',
                4: 'start u4 p3mm ep5 a1 c2 s16 k3 c3 p4b a30 p4c end'}
        self.want = sets[self.opt.get('st', 0)].split()

    def o(self, k, d):
        return self.opt.get(k, d)

    def a(self, x, tag=None):
        if isinstance(x, str):
            self.items += I(x, tag)
        else:
            self.items += x

    def ag(self, groups):
        for g in groups:
            self.items += g

    def label(self, p='L'):
        self.nlabel += 1
        return f'{p}_{self.nlabel}'

    def stamp(self, name):
        if not self.prof or name not in self.want:
            return []
        r = STAMP0 + 2 * self.nstamp
        assert r + 1 <= 101, 'too many stamps'
        self.nstamp += 1
        self.stamp_names.append(name)
        return I(f's_mem{"real" if self.o("rt", 0) else ""}time s[{r}:{r + 1}]')

    def timeout(self):
        return f's_sub_u32 s{sTMO}, s{sTMO}, 1\ns_cbranch_scc1 L_end'

    def arrive(self, soff, imm):
        return I(f's_atomic_add s{sONE}, s[22:23], s{soff} offset:{imm}')

    def poll_issue(self, soff, imm):
        return I(f's_mov_b32 s{sPOLL}, 0\ns_atomic_add s{sPOLL}, s[22:23], s{soff} offset:{imm} glc')

    def arrive_poll(self, soff, imm):
        return I(f's_mov_b32 s{sPOLL}, 1\ns_atomic_add s{sPOLL}, s[22:23], s{soff} offset:{imm} glc')

    def poll_check(self, soff, imm, want, first=0):
        if self.o('nosync', 0):
            return I('s_waitcnt lgkmcnt(0)')
        ok, again = self.label('L_ok'), self.label('L_again')
        it = I(f's_waitcnt lgkmcnt(0)\ns_cmp_eq_u32 s{sPOLL}, {want - first}\ns_cbranch_scc1 {ok}')
        it += I(f'{again}:') + self.poll_issue(soff, imm) + I(self.timeout())
        it += I(f's_waitcnt lgkmcnt(0)\ns_cmp_eq_u32 s{sPOLL}, {want}\ns_cbranch_scc0 {again}\n{ok}:')
        return it

    def dma(self, m, u):
        tag = f'd{m}{u}'
        if m == 'w':
            return [I(f'buffer_load_dword v{aWU}, v{aWU}, {sr(sWU)}, 0 offen', tag)]
        if m == 'g':
            g = [I(f'buffer_load_dwordx4 v{vA0 + i}, {sr(sGU)}, s{sDM} offen offset:{i * 1024} lds', tag) for i in range(3)]
            g[0] = I(f's_xor_b32 s{sDM}, s{sRG}, {u}\ns_add_u32 m0, s{sMG}, {self.gslot(u)}\ns_mul_i32 s{sDM}, s{sDM}, {32 * 2752}') + g[0]
            return g
        pre = I(f's_add_u32 m0, s{sM0W2}, {slot_of(m, u)}')
        if m == 'x':
            pre += I(f's_xor_b32 s{sDM}, s{sR7}, {u << 7}')
            src, d = aXS, sX
        elif m == 'o':
            pre += I(f's_xor_b32 s{sDM}, s{sRO16}, {u << 16}')
            src, d = aOS, sWO
        else:
            pre += I(f's_add_u32 s{sDM}, s{TW + u}, {WOFF[m]}')
            src, d = aWS, sWQ
        g = [I(f'buffer_load_dwordx4 v{src + i}, {sr(d)}, s{sDM} offen offset:{i * 1024} lds', tag) for i in range(2)]
        g[0] = pre + g[0]
        return g

    def set_seq(self, txt):
        for t in txt.split():
            key = (t[0], int(t[1:]))
            self.seq += [(key, i) for i in range({'w': 1, 'g': 3}.get(key[0], 2))]

    def pos(self, key):
        return max(i for i, (k, _) in enumerate(self.seq) if k == key) + 1

    def take(self, n, must=False):
        g = []
        while self.issued < min(n, len(self.seq)):
            key, i = self.seq[self.issued]
            if self.curit < self.minit.get(key, 0):
                assert not must, (key, self.curit)
                break
            g.append(self.dma(*key)[i])
            self.issued += 1
        return g

    def issue_to(self, n):
        self.ag(self.take(n, True))

    def prologue(self):
        a = self.a
        a('s_load_dwordx16 s[4:19], s[0:1], 0\ns_load_dwordx4 s[20:23], s[0:1], 64')
        if self.prof:
            a('s_memrealtime s[100:101]')
        a(self.stamp('start'))
        a('s_cmp_ge_u32 s2, 256\ns_cbranch_scc1 L_end')
        a(f'v_and_b32 v{vLANE}, 63, v0\nv_lshrrev_b32 v{vTMP}, 6, v0\nv_lshlrev_b32 v{vL16}, 4, v{vLANE}\nv_readfirstlane_b32 s{sW}, v{vTMP}')
        a(f'''s_getpc_b64 s[{sT0}:{sT1}]
L_pc:
s_lshr_b32 s{sT3}, s2, 3
s_lshl_b32 s{sT2}, s{sT3}, 10
v_lshl_add_u32 v20, v0, 2, s{sT2}
v_min_u32 v20, L_end-L_pc, v20
v_mov_b32 v21, s{sT1}
v_add_co_u32 v20, vcc, s{sT0}, v20
v_addc_co_u32 v21, vcc, 0, v21, vcc
global_load_dword v22, v[20:21], off''')
        a(f'''s_bfe_u32 s{sG}, s2, 0x20001
s_lshr_b32 s{sT0}, s{sT3}, 2
s_lshl3_add_u32 s{sG}, s{sG}, s{sT0}
s_and_b32 s{sJ}, s2, 1
s_and_b32 s{sT1}, s{sT3}, 3
s_lshl2_add_u32 s{sJ}, s{sJ}, s{sT1}
s_lshl_b32 s{sT1}, s{sT1}, 1
s_xor_b32 s{sROT}, s{sT0}, s{sT1}
s_and_b32 s{sRO16}, s{(sT0, sROT)[self.o('ro_src', 0)]}, {self.o('ro_mask', 7)}
s_lshl_b32 s{sRO16}, s{sRO16}, 16
s_mov_b32 s{sTMO}, 200000
s_mov_b32 s{sONE}, 1
s_lshl_b32 s{sM0W2}, s{sW}, 11
s_lshl2_add_u32 s{sCT}, s{sJ}, s{sW}''')
        a(f'''v_lshrrev_b32 v{vTMP}, 3, v{vLANE}
v_lshrrev_b32 v{vTMP2}, 4, v{vLANE}
v_and_b32 v20, 7, v{vLANE}
v_xor_b32 v21, v20, v{vTMP2}
v_lshlrev_b32 v21, 4, v21
v_lshl_add_u32 v21, v{vTMP}, 10, v21
s_lshl_b32 s{sT0}, s{sG}, 16
s_lshl_b32 s{sT1}, s{sW}, 14
s_add_u32 s{sT0}, s{sT0}, s{sT1}
v_add_u32 v{aXS}, s{sT0}, v21
v_xor_b32 v21, 64, v{aXS}
v_add_u32 v{aXS + 1}, {8192 - 1024}, v21''')
        a(f'''v_and_b32 v21, 2, v{vTMP}
v_xor_b32 v21, v20, v21
v_lshlrev_b32 v21, 4, v21
s_lshl_b32 s{sT1}, s{sJ}, 7
v_add_u32 v21, s{sT1}, v21
s_lshl_b32 s{sT0}, s{sW}, 4
v_add_u32 v23, s{sT0}, v{vTMP}
v_mul_u32_u24 v24, 3072, v23
v_add_u32 v{aWS}, v24, v21
v_xor_b32 v24, 64, v{aWS}
v_add_u32 v{aWS + 1}, {8 * 3072 - 1024}, v24
v_lshl_add_u32 v{aOS}, v23, 10, v21
v_xor_b32 v24, 64, v{aOS}
v_add_u32 v{aOS + 1}, {8192 - 1024}, v24''')
        for u in range(8):
            a(f's_xor_b32 s{TW + u}, s{sROT}, {u}\ns_mul_i32 s{TW + u}, s{TW + u}, {64 * 3072}')
        a(f'v_lshlrev_b32 v{vKVZ}, 4, v{vTMP2}\nv_add_u32 v{vKVZ}, 1024, v{vKVZ}')
        for d, n in ((sX, 2048 * 512 * 2), (sWQ, 512 * 1536 * 2), (sWO, 512 * 512 * 2), (sGU, 512 * 1376 * 2), (sWD, 1376 * 512 * 2), (sOUT, 2048 * 512 * 2), (sWS, WS_BYTES)):
            a(f's_mov_b32 s{d + 2}, {n}\ns_mov_b32 s{d + 3}, 0x20000')
        self.setup_early()
        a(f'''s_lshl_b32 s{sT0}, s2, 13
v_lshl_add_u32 v25, v{vLANE}, 7, s{sT0}
v_mov_b32 v{vTMP}, 0
s_cmp_lt_u32 s2, 16
s_cselect_b32 s{sT3}, s{sW}, 0''')
        a('s_waitcnt lgkmcnt(0)')
        if self.prof:
            a('s_mov_b32 s0, s100')
        a(self.stamp('karg'))
        a(f'''s_mov_b64 s[{sX}:{sX + 1}], s[4:5]
s_mov_b64 s[{sWQ}:{sWQ + 1}], s[6:7]
s_mov_b64 s[{sWO}:{sWO + 1}], s[8:9]
s_mov_b64 s[{sWS}:{sWS + 1}], s[22:23]
s_cmp_lt_u32 s{sW}, 2
s_cselect_b64 s[{sGU}:{sGU + 1}], s[12:13], s[14:15]
s_bitcmp1_b32 s{sW}, 0
s_cselect_b64 s[{sWU}:{sWU + 1}], s[14:15], s[12:13]
s_lshl_b32 s{sR7}, s{sROT}, 7''')
        self.seq, self.issued, self.minit, self.curit = [], 0, {}, 0
        self.set_seq(('x0 k0 x1 v0', 'x0 x1 k0 v0')[self.o('ford', 0)])
        nfirst = len(self.seq)
        self.korder = ('x0,k0 x1 x2,k1 x3,x4 x5,k2 x6,k3 x7,k4 k5 k6,k7',
                       'x0,k0 x1 x2,k1 x3,k2 x4,k3 x5,x6 x7,k4 k5,k6 k7',
                       'x0,k0 x1 x2,x3 x4,k1 x5,k2 x6,k3 x7,k4 k5 k6,k7')[self.o('kord', 0)]
        rest = self.korder.replace(',', ' ').split()[3:] + 'v1 v2 v3 v4 v5 v6 v7 q0 q1 q2 q3 q4 q5 q6 q7 o0 o1 o2 o3 g0 g1 o4 o5 o6 o7'.split()
        wpos = self.o('wpos', 21)
        if wpos >= 0:
            rest.insert(wpos, 'w0')
        self.set_seq(' '.join(rest))
        self.set_seq(' '.join(f'g{i}' for i in range(2, 16)))
        skip = self.label('L_nz')
        a(f's_cmp_eq_u32 s{sT3}, 3\ns_cbranch_scc0 {skip}')
        a(cond_begin())
        a(f'buffer_store_dword v{vTMP}, v25, {sr(sWS)}, 0 offen sc1', 'zero')
        a(cond_end())
        a(f'{skip}:')
        self.issue_to(nfirst)
        a(f'''s_mov_b64 s[{sWD}:{sWD + 1}], s[16:17]
s_mov_b64 s[{sOUT}:{sOUT + 1}], s[18:19]
s_cmp_eq_u32 s{sW}, 2
s_cselect_b64 s[{sWU}:{sWU + 1}], s[16:17], s[{sWU}:{sWU + 1}]
s_cmp_eq_u32 s{sW}, 3
s_cselect_b64 s[{sWU}:{sWU + 1}], s[{sWO}:{sWO + 1}], s[{sWU}:{sWU + 1}]
s_cselect_b32 s{sT0}, 16, 43
s_lshl_b32 s{sWU + 2}, s{sT0}, 15
s_mov_b32 s{sWU + 3}, 0x20000
s_mul_i32 s{sT1}, s{sT0}, s2
v_add_lshl_u32 v{aWU}, v{vLANE}, s{sT1}, 7
v_cmp_gt_u32 vcc, s{sT0}, v{vLANE}
v_cndmask_b32 v{aWU}, 2.0, v{aWU}, vcc
s_cmp_lt_u32 s2, {self.o('wu_rows', 256)}
s_cselect_b32 s{sT0}, {self.o('wu_mask', 15)}, {self.o('wu_mask', 15) & 12}
s_bitcmp1_b32 s{sT0}, s{sW}
s_cselect_b64 vcc, -1, 0
v_cndmask_b32_e64 v0, v{aWU}, 2.0, vcc
v_cndmask_b32 v{aWU}, 2.0, v{aWU}, vcc''')
        if self.o('tlb', 0):
            a(f's_lshl_b32 s{sT1}, s{sT1}, 7\ns_load_dword s{sPOLL}, s[{sWU}:{sWU + 1}], s{sT1}')
        if self.o('wu_half', 0):
            a(f'v_and_b32 v{aWU}, 0xffffff00, v{aWU}')
        if self.o('p3map', 0) == 0:
            a(f'''s_lshr_b32 s{sSC}, s{sG}, 1
s_and_b32 s{sT0}, s{sG}, 1
s_lshr_b32 s{sT1}, s{sJ}, 2
s_lshl1_add_u32 s{sT0}, s{sT1}, s{sT0}
s_and_b32 s{sT1}, s{sJ}, 3
s_lshl2_add_u32 s{sMM}, s{sT0}, s{sT1}''')
        else:
            a(f'''s_bfe_u32 s{sT0}, s2, 0x10002
s_lshr_b32 s{sT1}, s2, 5
s_lshl3_add_u32 s{sSC}, s{sT0}, s{sT1}
s_and_b32 s{sT0}, s2, 3
s_bfe_u32 s{sT1}, s2, 0x20003
s_lshl2_add_u32 s{sMM}, s{sT0}, s{sT1}''')
        a(f'''s_lshr_b32 s{sRG}, s{sSC}, {self.o('rg_shift', 0)}
s_and_b32 s{sRG}, s{sRG}, {self.o('rg_mask', 0)}
s_lshl_b32 s{sRG}, s{sRG}, 2
s_mul_i32 s{sT0}, s{sMM}, 3
s_lshl1_add_u32 s{sT1}, s{sMM}, 11
s_min_u32 s{sT0}, s{sT0}, s{sT1}
s_lshl_b32 s{sT0}, s{sT0}, 6
s_and_b32 s{sT1}, s{sW}, 1
s_mul_i32 s{sT2}, s{sT1}, {16 * 2752}
s_add_u32 s{sT0}, s{sT0}, s{sT2}
s_mul_i32 s{sMG}, s{sW}, 3072
s_lshr_b32 s{sT2}, s{sW}, 1
s_lshl_b32 s{sT2}, s{sT2}, 5
s_add_u32 s{sMG}, s{sMG}, s{sT2}''')
        for i in range(3):
            a(f'''v_add_u32 v20, {64 * i}, v{vLANE}
v_mul_u32_u24 v21, 21846, v20
v_lshrrev_b32 v21, 18, v21
v_mul_u32_u24 v21, {2752 - 192}, v21
v_add3_u32 v{vA0 + i}, v21, v{vL16}, s{sT0}''')
        a(f'''s_lshl_b32 s{sT1}, s{sCT}, 5
s_add_u32 s{sKVP}, s{sT1}, s{sG}
s_mul_i32 s{sKVP}, s{sKVP}, {SLOT}
s_add_u32 s{sKVP}, s{sKVP}, {KVP}
s_mul_i32 s{sKVG}, s{sCT}, {4 * SLOT}
s_add_u32 s{sKVG}, s{sKVG}, {KVG}
s_bfe_u32 s{sT0}, s{sG}, 0x20001
s_lshl2_add_u32 s{sT0}, s{sJ}, s{sT0}
s_lshr_b32 s{sT1}, s{sG}, 3
s_lshl2_add_u32 s{sT2}, s{sT0}, s{sT1}
s_mul_i32 s{sKVGRP}, s{sT2}, {8 * SLOT}
s_add_u32 s{sKVGRP}, s{sKVGRP}, {KVP}
s_mul_i32 s{sKVME}, s{sT2}, {SLOT}
s_add_u32 s{sKVME}, s{sKVME}, {KVG}
s_lshl_b32 s{sT2}, s{sT2}, 7
v_mov_b32 v{aRP}, s{sT2}
s_lshl_b32 s{sT0}, s{sT0}, 9
s_add_u32 s{sT0}, s{sT0}, {CNT + C_KV * 128}
v_lshl_add_u32 v{aH2}, v{vLANE}, 7, s{sT0}
s_lshl2_add_u32 s{sH}, s{sCT}, s{sT1}
s_lshl_b32 s{sH}, s{sH}, 7
s_add_u32 s{sT1}, s{sH}, {CNT + C_K1 * 128}
v_mov_b32 v{aH1}, s{sT1}
s_and_b32 s{sT0}, s{sG}, 1
s_cselect_b32 s{sT0}, 0, s{sW}
s_cmp_eq_u32 s{sT0}, 3
s_cselect_b32 s{sKVME}, s{sKVME}, 0
s_mov_b32 s{sMSK}, 0xaaaaaaaa
s_mov_b32 s{sMSK + 1}, 0xaaaaaaaa''')
        skip = self.label('L_ni')
        a(f's_cmp_eq_u32 s{sT3}, 3\ns_cbranch_scc0 {skip}')
        a(cond_begin())
        a(waitvm('zero'))
        a(f's_atomic_add s{sONE}, s[20:21], 0')
        a(cond_end())
        a(f'{skip}:')
        a(f'buffer_store_dwordx4 {vr(PK, 4)}, v{vL16}, {sr(sWS)}, s{sKVP} offen sc1')
        a(f'buffer_store_dwordx4 {vr(PK, 4)}, v{vKVZ}, {sr(sWS)}, s{sKVP} offen sc1')
        skip = self.label('L_nc')
        a(f's_cmp_eq_u32 s{sKVME}, 0\ns_cbranch_scc1 {skip}')
        a(cond_begin())
        a(f'buffer_store_dwordx4 {vr(PK, 4)}, v{vL16}, {sr(sWS)}, s{sKVME} offen sc1')
        a(f'buffer_store_dwordx4 {vr(PK, 4)}, v{vKVZ}, {sr(sWS)}, s{sKVME} offen sc1')
        a(cond_end())
        a(f'{skip}:')
        skip = self.label('L_ns')
        a(f's_cmp_eq_u32 s{sW}, 0\ns_cbranch_scc0 {skip}')
        a(cond_begin())
        a(f's_lshl3_add_u32 s{sT0}, s{sG}, s{sJ}\ns_lshl_b32 s{sT0}, s{sT0}, 9\ns_add_u32 s{sT0}, s{sT0}, {STATS}\nv_lshlrev_b32 v20, 3, v{vLANE}')
        a(f'buffer_store_dwordx2 {vr(PK, 2)}, v20, {sr(sWS)}, s{sT0} offen sc1')
        a(cond_end())
        a(f'{skip}:')

    def setup_early(self):
        a = self.a
        a(f'''v_and_b32 v27, 15, v{vLANE}
v_and_b32 v20, 1, v{vLANE}
v_bfe_u32 v21, v{vLANE}, 1, 1
v_lshl_add_u32 v20, v20, 1, v21
v_lshlrev_b32 v{vA3}, 3, v20
v_bfe_u32 v28, v{vLANE}, 2, 2
v_lshrrev_b32 v21, 5, v{vLANE}
v_lshl_add_u32 v20, v21, 3, v28
v_mul_u32_u24 v20, 192, v20
v_add_u32 v{vA3}, v{vA3}, v20
v_and_b32 v20, 1, v{vTMP2}
v_mul_u32_u24 v20, 6176, v20
s_and_b32 s{sT0}, s{sW}, 1
s_lshl_b32 s{sT0}, s{sT0}, 5
v_add3_u32 v{vA3}, v{vA3}, v20, s{sT0}
v_add_u32 v{vA4}, 0x20000, v{vA3}
v_lshl_add_u32 v28, v{vTMP2}, 3, v28
v_and_b32 v29, 3, v{vLANE}''')
        a(f'''v_lshlrev_b32 v20, 7, v28
v_bfe_u32 v21, v{vLANE}, 3, 2
v_xor_b32 v21, s{sW}, v21
v_lshl_add_u32 v20, v21, 5, v20
v_lshl_add_u32 v{vA5}, v29, 3, v20
v_add_u32 v{vA6}, 0x10000, v{vA5}
v_add_u32 v{vA7}, 0x20000, v{vA5}''')
        a(f'''v_lshrrev_b32 v20, 1, v27
v_xor_b32 v21, v20, v{vTMP2}
v_lshlrev_b32 v21, 4, v21
v_lshl_add_u32 v21, v27, 7, v21
v_add_u32 v{aXF}, s{sM0W2}, v21''')
        for tt in range(4):
            for p in range(2):
                if tt or p:
                    a(f'v_xor_b32 v{aXF + 2 * tt + p}, {tt * 2048 + p * 64}, v{aXF}')
        a(f'''v_lshrrev_b32 v21, 5, v{vLANE}
s_lshl_b32 s{sT0}, s{sW}, 1
v_add_u32 v21, s{sT0}, v21
v_xor_b32 v21, v21, v20
v_lshlrev_b32 v21, 4, v21
v_lshl_add_u32 v21, v27, 7, v21
v_and_b32 v20, 1, v{vTMP2}
v_lshl_add_u32 v21, v20, 3, v21
s_xor_b32 s{sT0}, s{sJ}, s{sROT}
s_lshl_b32 s{sT0}, s{sT0}, 13
v_add_u32 v{aXR}, s{sT0}, v21''')
        a(f'''s_lshl_b32 s{sT0}, s{sW}, 6
s_add_u32 s{sT0}, s{sT0}, {L_ST1}
v_lshl_add_u32 v{aSB}, v27, 2, s{sT0}
v_lshl_add_u32 v{aSA}, v{vTMP2}, 4, s{sT0}''')
        for tt in range(1, 4):
            a(f'v_xor_b32 v{aSA + tt}, {tt * 64}, v{aSA}\nv_xor_b32 v{aSB + tt}, {tt * 64}, v{aSB}')
        a(f'''v_mul_u32_u24 v20, {SLOT}, v29
v_add_u32 v{vZ4}, v20, v{vKVZ}
v_and_b32 v20, 7, v{vLANE}
v_mul_u32_u24 v20, {SLOT}, v20
v_add_u32 v{aZ8}, v20, v{vKVZ}
s_lshl2_add_u32 s{sCX}, s{sG}, s{sW}
s_lshl_b32 s{sCX}, s{sCX}, 7
v_mov_b32 v{vNEG}, 0x{f2u(-1e-6 * LOG2E):x}
v_mov_b32 v{aONE}, 1''')
        for r in range(4):
            a(f'v_mov_b32 v{ONES + r}, 0x3f803f80\nv_mov_b32 v{EPS4 + r}, 0x{f2u(1e-6):x}\nv_mov_b32 v{PK + r}, -1')

    def wreads(self, m, u, dst):
        g = []
        for sl in range(2):
            adr = slot_of(m, u) + sl * 4096
            base, off = vA5 + (adr >> 16), adr & 0xffff
            for h in range(2):
                g.append(I(f'ds_read_b64_tr_b16 {vr(dst + 4 * sl + 2 * h, 2)}, v{base} offset:{off + 512 * h}', f'r{m}{u}'))
        return g

    def task_reads(self, m, u):
        if m == 'x':
            return [I(f'ds_read_b128 {ar((4 * (2 * u + p) + tt) * 4, 4)}, v{aXF + 2 * tt + p} offset:{slot_of(m, u)}', f'r{m}{u}') for tt in range(4) for p in range(2)]
        self.wring[(m, u)] = BR + 8 * (self.wn & 3)
        self.wn += 1
        return self.wreads(m, u, self.wring[(m, u)])

    def task_mf(self, m, u):
        g = []
        for sl in range(2):
            s = 2 * u + sl
            if m == 'x':
                x = ar(16 * s, 4)
                g.append(I(f'v_mfma_f32_16x16x32_bf16 {vr(GRAM, 4)}, {x}, {x}, {vr(GRAM, 4) if s else 0}'))
                g.append(I(f'v_mfma_f32_16x16x32_bf16 {vr(SM, 4)}, {vr(ONES, 4)}, {x}, {vr(SM, 4) if s else 0}'))
                continue
            acc = {'k': ACC0, 'v': ACC1, 'q': ACC0}[m]
            wf = vr(self.wring[(m, u)] + 4 * sl, 4)
            for tt in range(5):
                x = ar((4 * s + tt) * 4, 4) if tt < 4 else vr(ONES, 4)
                d = vr(acc + 4 * tt, 4) if tt < 4 else vr(CS[m], 4)
                ab = f'{wf}, {x}' if m == 'q' else f'{x}, {wf}'
                g.append(I(f'v_mfma_f32_16x16x32_bf16 {d}, {ab}, {d if s else 0}'))
        g[0] = waitlg(f'r{m}{u}') + g[0]
        return g

    def run_iters(self, iters, la, extra, presync=None, stamps=None, first=None, target=None, blocks=None):
        a = self.a
        prev = []
        for n in range(len(iters) + 1):
            cur = iters[n] if n < len(iters) else []
            cur = sorted(cur, key=lambda t: t[0] == 'x' and n > 0)
            rd = list((first or {}).get(n, []))
            if cur:
                last = max(self.pos(t) for t in cur)
                if last > self.synced or (presync and n in presync):
                    self.issue_to(last)
                    if presync and n in presync:
                        a(presync[n])
                    self.synced = max(last, self.synced)
                    m, u = self.seq[self.synced - 1][0]
                    a(waitvm(f'd{m}{u}'))
                    a('s_barrier')
                    self.curit = max(self.curit, n + self.itbase)
                for t in cur:
                    rd += self.task_reads(*t)
            if target and n in target:
                want = target[n]
            else:
                want = max([self.pos(t) for t in iters[n + 1]] + [self.synced]) + la if n + 1 < len(iters) else 0
            dm = self.take(want)
            if stamps and n in stamps:
                a(self.stamp(stamps[n]))
            if blocks and n in blocks:
                blocks[n]()
            mf = []
            for t in prev:
                mf += self.task_mf(*t)
            mem = []
            nr, nd = len(rd), len(dm)
            for k in range(nr + nd):
                if dm and (not rd or (nd - len(dm) + 0.5) * nr <= (nr - len(rd)) * nd * 0.75):
                    mem.append(dm.pop(0))
                else:
                    mem.append(rd.pop(0))
            if mf:
                a(weave(mf, mem, extra.get(n, []), min(1.0, max(0.8, len(mem) / len(mf)))))
            else:
                self.ag(mem + extra.get(n, []))
            prev = cur

    def phi(self, acc, i, nm, r, cs):
        t = PT + i
        return each(f'''v_fma_f32 v{acc + i}, v{nm}, v{cs}, v{acc + i}
v_fma_f32 v{acc + i}, v{acc + i}, v{r}, v{EPS4}
v_fmamk_f32 v{t}, v{acc + i}, 0x{f2u(LOG2E):x}, v{vNEG}
v_exp_f32_e64 v{t}, v{t} clamp
v_max_f32 v{acc + i}, v{acc + i}, v{EPS4}
v_add_f32 v{acc + i}, v{acc + i}, v{t}''')

    def p1(self):
        a = self.a
        self.wring, self.wn, self.synced, self.itbase = {}, 0, 0, 0
        its = self.korder + ' v0,v1 v2,v3 v4,v5 v6,v7'
        iters = [[(t[0], int(t[1])) for t in it.split(',')] for it in its.split()]
        itof = {t: n for n, it in enumerate(iters) for t in it}
        nx, nk = itof[('x', 7)], itof[('k', 7)]
        assert nk == nx + 2 and itof[('k', 3)] < nx
        self.minit = {('v', 4): nx + 2, ('q', 0): nx + 2, ('q', 7): nk + 4, ('g', 0): 100, ('o', 4): 200}
        extra = {}
        extra[4] = [I(f'global_load_dword v{aINI}, v{vTMP}, s[20:21] sc1')]
        xr = [I(f'ds_read_b64 {vr(XR + 2 * tt, 2)}, v{aXR} offset:{tt * 2048}') for tt in range(4)]
        extra[nx + 2] = each(f'''s_mov_b32 vcc_lo, 0xcccccccc
s_mov_b32 vcc_hi, 0xcccccccc
v_cndmask_b32 v{GRAM}, v{GRAM}, v{GRAM + 1}, s[{sMSK}:{sMSK + 1}]
v_cndmask_b32 v{GRAM + 2}, v{GRAM + 2}, v{GRAM + 3}, s[{sMSK}:{sMSK + 1}]
v_mul_f32 v{SM}, 0x{f2u(-1 / 512):x}, v{SM}
v_cndmask_b32 v{GRAM}, v{GRAM}, v{GRAM + 2}, vcc
v_mul_f32 v{GRAM}, 0x{f2u(1 / 512):x}, v{GRAM}
v_fma_f32 v{GRAM}, -v{SM}, v{SM}, v{GRAM}
v_max_f32 v{GRAM}, 0, v{GRAM}
v_add_f32 v{GRAM}, 0x{f2u(1e-5):x}, v{GRAM}
v_rsq_f32 v{GRAM}, v{GRAM}''')
        extra[nx + 2].append(I(f's_mov_b32 exec_lo, 0x00f0000f\ns_mov_b32 exec_hi, 0xf0000f00') +
                             I(f'ds_write2_b32 v{aSB}, v{SM}, v{GRAM} offset1:64', 'stw') + I('s_mov_b64 exec, -1'))
        presync = {nk + 1: waitlg('stw')}
        sa = []
        for tt in range(4):
            sa.append(I(f'ds_read_b128 {vr(NM + 4 * tt, 4)}, v{aSA + tt}'))
            sa.append(I(f'ds_read_b128 {vr(RR + 4 * tt, 4)}, v{aSA + tt} offset:256'))
        sb = [I(f'ds_read2_b32 {vr(STB + 2 * tt, 2)}, v{aSB + tt} offset1:64') for tt in range(4)]
        first = {nx: xr, nk + 1: sa, nk + 2: sb}
        ke = []
        for i in range(16):
            ke += self.phi(ACC0, i, NM + i, RR + i, CS['k'])
            ke += each(f'v_mul_f32 v{PT + i}, v{ACC0 + i}, v{RR + i}')
            if i & 1:
                ke += each(f'v_cvt_pk_bf16_f32 v{PK + (i >> 1)}, v{ACC0 + i - 1}, v{ACC0 + i}\nv_cvt_pk_bf16_f32 v{PKR + (i >> 1)}, v{PT + i - 1}, v{PT + i}')
        ke += each(f'''v_mfma_f32_16x16x32_bf16 {vr(Z, 4)}, {vr(PK, 4)}, {vr(ONES, 4)}, 0
v_mfma_f32_16x16x32_bf16 {vr(Z, 4)}, {vr(PK + 4, 4)}, {vr(ONES, 4)}, {vr(Z, 4)}''')
        cuts = [0, 27, 58, 90, len(ke)]
        for n in range(4):
            extra[nk + 2 + n] = ke[cuts[n]:cuts[n + 1]]
        ok, again = self.label('L_ok'), self.label('L_again')
        hint = I(f'v_cmp_ne_u32 vcc, 16, v{aINI}\ns_cbranch_vccz {ok}') + cond_begin()
        hint += I(f'{again}:\nglobal_load_dword v{aINI}, v{vTMP}, s[20:21] sc1') + I(self.timeout())
        hint += I(f's_waitcnt vmcnt(0)\nv_cmp_ne_u32 vcc, 16, v{aINI}\ns_cbranch_vccnz {again}') + cond_end()
        hint += I(f'{ok}:\ns_mov_b64 exec, 1\nbuffer_atomic_add v{aONE}, v{aH1}, {sr(sWS)}, 0 offen\ns_mov_b64 exec, -1')
        hi = self.o('h1_it', 5)
        blocks = {nk + hi: lambda: a(hint)}
        stamps = {0: 'd0', 2: 'it2', 4: 'it4', 6: 'it6', 8: 'it8', nk + 2: 'kdone', nk + 4: 'vm'}
        base = self.pos(('v', 7))
        target = {nk + 1 + i: base + self.o(f'tv{i}', d) for i, d in enumerate((0, 3, 3, 3, 3))}
        target[0] = 8 + self.o('la0', 2)
        self.run_iters(iters, self.o('la', 8), extra, presync, stamps, first, target, blocks)
        a(self.stamp('vdone'))
        for r in range(4):
            a(f'v_min_u32 v{Z + r}, -2, v{Z + r}')
        a(f'buffer_store_dwordx4 {vr(Z, 4)}, v{vKVZ}, {sr(sWS)}, s{sKVP} offen sc1')
        for i in range(16):
            a(f'v_fma_f32 v{ACC1 + i}, v{NM + i}, v{CS["v"]}, v{ACC1 + i}')
            if i & 1:
                a(f'v_cvt_pk_bf16_f32 v{VF + (i >> 1)}, v{ACC1 + i - 1}, v{ACC1 + i}')
            if i == 9:
                a(f'v_mfma_f32_16x16x32_bf16 {vr(KV, 4)}, {vr(PKR, 4)}, {vr(VF, 4)}, 0')
        a(f'v_mfma_f32_16x16x32_bf16 {vr(KV, 4)}, {vr(PKR + 4, 4)}, {vr(VF + 4, 4)}, {vr(KV, 4)}')
        for r in range(4):
            a(f'v_min_u32 v{KV + r}, -2, v{KV + r}')
        a(f'buffer_store_dwordx4 {vr(KV, 4)}, v{vL16}, {sr(sWS)}, s{sKVP} offen sc1')
        if hi > 5:
            a(hint)
        a(self.stamp('kvpub'))

    def gather_loads(self, n, sbase, vz, R):
        g = [I(f'buffer_load_dwordx4 {vr(R + 4 * n, 4)}, v{vz}, {sr(sWS)}, s{sbase} offen sc1')]
        for i in range(n):
            pre = f's_add_u32 s{sT2}, s{sbase}, {4 * SLOT}\n' if i == 4 else ''
            so = f's{sT2}' if i >= 4 else f's{sbase}'
            g.append(I(f'{pre}buffer_load_dwordx4 {vr(R + 4 * i, 4)}, v{vL16}, {sr(sWS)}, {so} offen offset:{(i & 3) * SLOT} sc1'))
        return g

    def gather(self, n, sbase, vz, R, dst):
        a = self.a
        ZR = R + 4 * n
        again, ok = self.label('L_again'), self.label('L_ok')
        a(f'{again}:')
        for k, m in enumerate(('quad_perm:[1,0,3,2]', 'quad_perm:[2,3,0,1]', 'row_half_mirror')[:n.bit_length() - 1]):
            for r in range(4):
                s = ZR + r if k == 0 else dst + 4 + r
                a(f'v_add_f32_dpp v{dst + 4 + r}, v{s}, v{s} {m} row_mask:0xf bank_mask:0xf')
        for i in range(1, n):
            for p in range(2):
                src = vr(R + 2 * p, 2) if i == 1 else vr(dst + 2 * p, 2)
                a(f'v_pk_add_f32 {vr(dst + 2 * p, 2)}, {src}, {vr(R + 4 * i + 2 * p, 2)}')
        a(f'''v_pk_add_f32 {vr(ZR + 4, 2)}, {vr(dst, 2)}, {vr(dst + 2, 2)}
v_pk_add_f32 {vr(ZR + 6, 2)}, {vr(dst + 4, 2)}, {vr(dst + 6, 2)}
v_pk_add_f32 {vr(ZR + 4, 2)}, {vr(ZR + 4, 2)}, {vr(ZR + 6, 2)}
v_cmp_u_f32 vcc, v{ZR + 4}, v{ZR + 5}
s_cbranch_vccz {ok}''')
        a(cond_begin())
        a(f'v_max_u32 v{ZR + 4}, v{R}, v{R + 1}')
        for i in range(1, 2 * n + 2):
            a(f'v_max3_u32 v{ZR + 4}, v{ZR + 4}, v{R + 2 * i}, v{R + 2 * i + 1}')
        a(f'v_cmp_eq_u32 vcc, -1, v{ZR + 4}\ns_cbranch_vccz {ok}')
        self.ag(self.gather_loads(n, sbase, vz, R))
        a(self.timeout())
        a(f's_waitcnt vmcnt(0)\ns_branch {again}')
        a(cond_end())
        a(f'{ok}:')

    def qpass(self, role):
        a = self.a
        R = 192
        iters = [[('q', 2 * n), ('q', 2 * n + 1)] for n in range(4)]
        blocks = {}
        b = self.pos(('q', 7))
        if role == 1:
            def hint2():
                a(f's_mov_b64 exec, 15\nbuffer_atomic_add v{aONE}, v{aH2}, {sr(sWS)}, 0 offen\ns_mov_b64 exec, -1')

            def b2():
                if self.o('h2pos', 1) == 1:
                    hint2()
                self.gather(8, sKVGRP, aZ8, R, PK)
                for r in range(8):
                    a(f'v_min_u32 v{PK + r}, -2, v{PK + r}')
                a(f'buffer_store_dwordx4 {vr(PK, 4)}, v{vL16}, {sr(sWS)}, s{sKVME} offen sc1')
                a(f'buffer_store_dwordx4 {vr(PK + 4, 4)}, v{vKVZ}, {sr(sWS)}, s{sKVME} offen sc1')
                if self.o('h2pos', 1) == 2:
                    hint2()
            a(f'v_readfirstlane_b32 s{sT3}, v{aRP}')
            a(self.poll_issue(sT3, CNT + C_K1 * 128))
            self.issue_to(self.issued + self.o('r_pre', 2))
            a(self.poll_check(sT3, CNT + C_K1 * 128, 8))
            self.ag(self.gather_loads(8, sKVGRP, aZ8, R))
            if self.o('h2pos', 1) == 0:
                hint2()
            blocks = {self.o('rb2', 1): b2}
        self.itbase = 100
        self.issue_to(b + self.o('q_pre', -6))
        target = {n: b + self.o(f'tq{n}', d) for n, d in enumerate((-2, 2, 6, 9, 12))}
        extra = {4: [I('s_nop 0')] * 11 + [waitlg('rq7') + self.poll_issue(sH, CNT + C_KV * 128)] + [I('s_nop 0')] * 4}
        self.run_iters(iters, 0, extra, {0: []}, {0: 'q0'} if role == 0 else None, None, target, blocks)

    def g_cs(self, i):
        g = []
        for sp in range(2):
            s = 2 * i + sp
            for p in range(3):
                g.append(I(f'v_mfma_f32_16x16x32_bf16 {vr(EXT + 4 * p, 4)}, {vr(SEL, 4)}, {treg(p, s)}, {vr(EXT + 4 * p, 4) if s else 0}'))
        return g

    def gslot(self, i):
        nA = self.o('nA', 13)
        return GSLOT[i % 7] if i < nA else L_O + (i - nA) * GSZ

    def ld(self, n, whole=False):
        nA = self.o('nA', 13)
        top = min(nA, self.g_free + 7)
        if top == nA and self.c_ok:
            top = 16
        want = min(self.issued + n, self.pos(('g', top - 1)))
        if whole and want > 0:
            want = self.pos(self.seq[want - 1][0])
        return self.take(want, True)

    def g_proc(self, k, nld, after=None, side=None):
        a = self.a
        for _ in range(k):
            i = self.g_done
            if i >= 16:
                break
            self.ag(self.ld(max(0, self.pos(('g', i)) - self.issued)))
            assert self.issued >= self.pos(('g', i))
            a(waitvm(f'dg{i}'))
            a('s_waitcnt lgkmcnt(0)\ns_barrier')
            self.g_free = i
            if after:
                after()
                after = None
            adr = self.gslot(i)
            base, off = (vA3, vKVZ, vA4)[adr >> 16], adr & 0xffff
            rd = [I(f'ds_read_b64_tr_b16 {thalf(p, 2 * i + sp, h)}, v{base} offset:{off + sp * 3072 + h * 768 + p * 64}')
                  for sp in range(2) for p in range(3) for h in range(2)]
            dm = self.ld(nld) if side is None else [side.pop(0) for _ in range(min(nld, len(side)))]
            mem = []
            while rd or dm:
                if dm:
                    mem.append(dm.pop(0))
                mem += rd[:4]
                rd = rd[4:]
            if self.g_pend is not None:
                a(weave(self.g_cs(self.g_pend), mem, []))
            else:
                self.ag(mem)
            self.g_pend = i
            self.g_done += 1

    def blk_dma(self, ldsbase, u, tag, extra=0, rot=True):
        g = [I(f'buffer_load_dwordx4 v{vA5}, {sr(sWS)}, s{sDM} offen offset:{h * 1024} sc1 lds', tag) for h in range(2)]
        so = f's_xor_b32 s{sDM}, s{sRO13}, {(u << 13) + extra}' if rot else f's_mov_b32 s{sDM}, {(u << 13) + extra}'
        g[0] = I(f's_add_u32 m0, s{sM0W2}, {ldsbase + u * 8192}\n{so}') + g[0]
        return g

    def attn(self):
        a = self.a
        ep = each(f'''s_lshr_b32 s{sRO13}, s{sRO16}, 3
s_lshl_b32 s{sM0W}, s{sW}, 10
s_and_b32 s{sT1}, s{sJ}, 1
s_lshl2_add_u32 s{sCHP}, s{sG}, s{sT1}
s_lshl_b32 s{sCHP}, s{sCHP}, 7
s_lshr_b32 s{sT2}, s{sW}, 1
s_lshl1_add_u32 s{sKVGRP}, s{sSC}, s{sT2}
s_and_b32 s{sT1}, s{sW}, 1
s_lshl2_add_u32 s{sCHC}, s{sKVGRP}, s{sT1}
s_and_b32 s{sT0}, s{sMM}, 1
s_lshl1_add_u32 s{sCAP}, s{sT0}, s{sCHC}
s_lshl_b32 s{sCHC}, s{sCHC}, 7
s_lshl_b32 s{sCAP}, s{sCAP}, 7
s_lshl_b32 s{sMH}, s{sT2}, 15
s_lshl_b32 s{sT0}, s{sT1}, 12
s_add_u32 s{sMH}, s{sMH}, s{sT0}
s_lshl_b32 s{sT1}, s{sT1}, 8
s_lshl_b32 s{sT2}, s{sT2}, 10
s_or_b32 s{sT1}, s{sT1}, s{sT2}
v_xor_b32 v{vTMP}, s{sT1}, v{vL16}
v_xor_b32 v{vTMP2}, 1024, v{vTMP}''')
        ep0, ep = ep, []
        for i in range(16):
            tt, r = i >> 2, i & 3
            ep += self.phi(ACC0, i, STB + 2 * tt, STB + 2 * tt + 1, CS['q'] + r)
            if i & 1:
                ep += each(f'v_cvt_pk_bf16_f32 v{PQ + (i >> 1)}, v{ACC0 + i - 1}, v{ACC0 + i}')
        for tt in range(4):
            for p in range(2):
                ep += each(f'v_lshlrev_b32 v{HACC + 4 * tt + 2 * p}, 16, v{XR + 2 * tt + p}\nv_and_b32 v{HACC + 4 * tt + 2 * p + 1}, 0xffff0000, v{XR + 2 * tt + p}')
        ep += each(f'''v_lshrrev_b32 v{SEL}, 2, v{vLANE}
v_xor_b32 v{SEL}, v{SEL}, v{vLANE}
v_bfe_i32 v{SEL}, v{SEL}, 2, 1
v_not_b32 v{SEL}, v{SEL}
v_and_b32 v{SEL}, 0x3f803f80, v{SEL}
v_mov_b32 v{SEL + 1}, v{SEL}
v_mov_b32 v{SEL + 2}, v{SEL}
v_mov_b32 v{SEL + 3}, v{SEL}''')
        ep = ep0 + ep
        other, join = self.label('L_red'), self.label('L_join')
        a(f's_cmp_lg_u32 s{sKVME}, 0\ns_cbranch_scc1 {other}')
        a(cond_begin())
        save = (self.issued, self.synced, self.wn, self.curit)
        self.qpass(0)
        a(f's_branch {join}\n{other}:')
        a(cond_else())
        self.issued, self.synced, self.wn, self.curit = save
        self.qpass(1)
        a(cond_endif())
        a(f'{join}:')
        a(self.stamp('qdone'))
        assert self.issued >= self.pos(('q', 7))
        a('s_barrier')
        self.curit = 200
        self.g_done, self.g_free, self.g_pend, self.c_ok = 0, 0, None, False
        ep += each(f'''s_lshl_b32 s{sT0}, s{sG}, 16
s_add_u32 s{sT0}, s{sT0}, s{sM0W2}
s_add_u32 s{sKVP}, s{sT0}, {OBUF}
s_lshl_b32 s{sT1}, s{sJ}, 13
s_add_u32 s{sT3}, s{sKVP}, s{sT1}''')
        nh = self.o('ep_head', 90)
        dm = self.ld(self.o('n_ep', 4))
        a(interleave(ep[:nh], dm, start=2, every=nh / (len(dm) + 0.5)))
        a(self.stamp('epq'))
        a(self.poll_check(sH, CNT + C_KV * 128, 4))
        a(self.stamp('hint2'))
        R, KS = 48, 88
        self.ag(self.gather_loads(4, sKVG, vZ4, R))
        dm = self.ld(self.o('n_a', 3))
        a(interleave(ep[nh:], dm, start=2, every=(len(ep) - nh) / (len(dm) + 0.5)))
        self.ag(self.ld(self.o('n_b', 5)))
        self.gather(4, sKVG, vZ4, R, KS)
        a(self.stamp('hop2'))
        AK, NUM, DEN, X = 120, 48, 64, 80
        for i in range(4):
            a(f'v_cvt_pk_bf16_f32 v{AK + i}, v{KS + 2 * i}, v{KS + 2 * i + 1}')
        for tt in range(4):
            a(f'v_mfma_f32_16x16x16_bf16 {vr(DEN + 4 * tt, 4)}, {vr(AK + 2, 2)}, {vr(PQ + 2 * tt, 2)}, {vr(EPS4, 4)}')
        for tt in range(4):
            a(f'v_mfma_f32_16x16x16_bf16 {vr(NUM + 4 * tt, 4)}, {vr(AK, 2)}, {vr(PQ + 2 * tt, 2)}, 0')
        for tt in range(4):
            a(f'v_rcp_f32 v{DEN + 4 * tt}, v{DEN + 4 * tt}')
        for hh in range(2):
            for t in range(2):
                tt = 2 * hh + t
                for p in range(2):
                    n = NUM + 4 * tt + 2 * p
                    a(f'v_pk_mul_f32 {vr(n, 2)}, {vr(n, 2)}, {vr(DEN + 4 * tt, 2)} op_sel_hi:[1,0]')
                    a(f'v_cvt_pk_bf16_f32 v{X + 4 * hh + 2 * t + p}, v{n}, v{n + 1}')
            a(f'v_permlane16_swap_b32 v{X + 4 * hh}, v{X + 4 * hh + 2}\nv_permlane16_swap_b32 v{X + 4 * hh + 1}, v{X + 4 * hh + 3}')
            a(f'buffer_store_dwordx4 {vr(X + 4 * hh, 4)}, v{(vTMP, vTMP2)[hh]}, {sr(sWS)}, s{sT3} offen sc1', 'ost')
        a(self.stamp('ost'))
        if self.o('w2pos', 0) == 1:
            a(f'buffer_load_dword v0, v0, {sr(sWU)}, 0 offen')
        self.ag(self.ld(self.o('n_c', 4)))
        assert self.issued >= self.pos(('o', 7))
        a(waitvm('do7'))
        a('s_barrier')
        rd = [g for u in range(8) for g in self.wreads('o', u, WOF + 8 * u)]
        dm = self.ld(self.o('n_w', 3))
        a(interleave(rd, dm, start=2, every=len(rd) / (len(dm) + 0.5)))
        a(f'''v_add_u32 v{vA5}, s{sKVP}, v{vL16}
v_lshrrev_b32 v{vA6}, 5, v{vLANE}
v_lshlrev_b32 v{vA6}, 11, v{vA6}
v_bfe_u32 v{vNEG}, v{vLANE}, 4, 1
v_lshl_add_u32 v{vA6}, v{vNEG}, 9, v{vA6}
v_and_b32 v{vNEG}, 15, v{vLANE}
v_lshl_add_u32 v{vNEG}, v{vNEG}, 4, v{vA6}
v_add_u32 v{vA6}, 0x10000, v{vNEG}
v_add_u32 v{vKVZ}, 0x10000, v{vA3}''')
        a(self.stamp('word'))
        self.g_proc(self.o('gc', 2), self.o('gc_n', 1))
        a(waitvm('ost'))
        a(self.stamp('oack'))
        a(self.arrive_poll(sCX, CNT))
        self.ag(self.ld(self.o('n_d', 6), True))
        a(self.poll_check(sCX, CNT, 8, 1))
        a(self.stamp('oflag'))

    def gemm16(self, steps, aop, pre_sync, side_at, ring0):
        a = self.a
        LA = 3

        def reads(n):
            vb, off = steps[n]
            return [I(f'ds_read_b128 {vr(32 + 4 * ((4 * (n + ring0) + tt) & 15), 4)}, v{vb} offset:{off + (tt >> 1) * 1024 + (tt & 1) * 256}', f'g{n + ring0}') for tt in range(4)]
        for n in range(min(LA, len(steps))):
            a(pre_sync.get(n, []))
            self.ag(reads(n))
        for n in range(len(steps)):
            a(waitlg(f'g{n + ring0}'))
            side = []
            if n + LA < len(steps):
                a(pre_sync.get(n + LA, []))
                side = reads(n + LA)
            mf = [I(f'v_mfma_f32_16x16x32_bf16 {vr(HACC + 4 * tt, 4)}, {aop(n)}, {vr(32 + 4 * ((4 * (n + ring0) + tt) & 15), 4)}, {vr(HACC + 4 * tt, 4)}') for tt in range(4)]
            ex = list(side_at.get(n, []))
            for tt in range(4):
                a(mf[tt])
                if side:
                    a(side.pop(0))
                if ex and (tt in (1, 3) or len(ex) > 2):
                    a(ex.pop(0))
            self.ag(ex)

    def p2(self):
        a = self.a
        d = [g for u in range(8) for g in self.blk_dma(L_O, u, f'o{u >> 1}')]
        nd = self.o('p2_d', 8)
        self.ag(d[:nd])
        ge = self.o('ge', 4)
        assert self.g_done >= 1 and self.issued >= self.pos(('g', self.g_done + ge - 1))
        d = d[nd:]
        self.g_proc(ge, 2, None, d)
        assert self.g_done <= 8
        self.ag(d[:self.o('p2_d2', 16)])
        d = d[self.o('p2_d2', 16):]
        sync = {4 * c: waitvm(f'o{c}') + I('s_barrier') for c in range(4)}
        sync[0] = I('s_waitcnt lgkmcnt(0)') + sync[0] + self.stamp('o0')
        self.g_free = self.g_done
        rest = d + self.ld(self.o('p2_g', 12))
        side = {}
        for i, g in enumerate(rest):
            side.setdefault(i * self.o('p2_span', 16) // len(rest), []).append(g)
        self.gemm16([(vA6, s * 4096) for s in range(16)], lambda s: vr(WOF + 4 * s, 4), sync, side, 0)
        a(self.stamp('p2mm'))
        X, S, SS, U = 80, 64, 68, 72
        a(f'''s_lshl_b32 s{sT0}, s{sG}, 16
s_lshl_b32 s{sT1}, s{sCT}, 10
s_add_u32 s{sT0}, s{sT0}, s{sT1}
s_add_u32 s{sT0}, s{sT0}, {HBUF}
s_add_u32 s{sT1}, s{sT0}, 32768
s_lshr_b32 s{sT2}, s{sM0W2}, 2
v_lshl_add_u32 v{vTMP}, v{vLANE}, 3, s{sT2}''')
        for hh in range(2):
            for t in range(2):
                for p in range(2):
                    h = HACC + 4 * (2 * hh + t) + 2 * p
                    a(f'v_cvt_pk_bf16_f32 v{X + 4 * hh + 2 * t + p}, v{h}, v{h + 1}')
            a(f'v_permlane16_swap_b32 v{X + 4 * hh}, v{X + 4 * hh + 2}\nv_permlane16_swap_b32 v{X + 4 * hh + 1}, v{X + 4 * hh + 3}')
            a(f'buffer_store_dwordx4 {vr(X + 4 * hh, 4)}, v{vL16}, {sr(sWS)}, s{sT0 + hh} offen sc1', 'hst')
        a(self.stamp('hst'))
        if self.o('w2pos', 0) == 2:
            a(f'buffer_load_dword v0, v0, {sr(sWU)}, 0 offen')
        for tt in range(4):
            h = HACC + 4 * tt
            a(f'''v_pk_add_f32 {vr(U, 2)}, {vr(h, 2)}, {vr(h + 2, 2)}
v_pk_mul_f32 {vr(U + 2, 2)}, {vr(h, 2)}, {vr(h, 2)}
v_pk_fma_f32 {vr(U + 2, 2)}, {vr(h + 2, 2)}, {vr(h + 2, 2)}, {vr(U + 2, 2)}
v_add_f32 v{S + tt}, v{U}, v{U + 1}
v_add_f32 v{SS + tt}, v{U + 2}, v{U + 3}''')
        for b in (S, SS):
            a(f'v_permlane16_swap_b32 v{b}, v{b + 1}\nv_permlane16_swap_b32 v{b + 2}, v{b + 3}')
        for b in (S, SS):
            a(f'v_add_f32 v{b}, v{b}, v{b + 1}\nv_add_f32 v{b + 2}, v{b + 2}, v{b + 3}')
        for b in (S, SS):
            a(f'v_permlane32_swap_b32 v{b}, v{b + 2}')
        a(f'v_add_f32 v{U}, v{S}, v{S + 2}\nv_add_f32 v{U + 1}, v{SS}, v{SS + 2}')
        a(f'ds_write_b64 v{vTMP}, {vr(U, 2)} offset:{L_SC}')

        def stats_out():
            skip = self.label('L_ns')
            a(f's_cmp_eq_u32 s{sW}, 0\ns_cbranch_scc0 {skip}')
            a(cond_begin())
            for w in range(1, 4):
                a(f'ds_read_b64 {vr(U + 2 * w, 2)}, v{vTMP} offset:{L_SC + 512 * w}')
            a(f'''s_lshl3_add_u32 s{sT0}, s{sG}, s{sJ}
s_lshl_b32 s{sT0}, s{sT0}, 9
s_add_u32 s{sT0}, s{sT0}, {STATS}
v_and_b32 v{S}, 31, v{vLANE}
v_lshrrev_b32 v{S + 1}, 5, v{vLANE}
v_lshlrev_b32 v{S + 1}, 3, v{S + 1}
v_lshl_add_u32 v{S}, v{S}, 4, v{S + 1}
v_pk_add_f32 {vr(U, 2)}, {vr(U, 2)}, {vr(U + 2, 2)}
v_pk_add_f32 {vr(U + 4, 2)}, {vr(U + 4, 2)}, {vr(U + 6, 2)}
v_pk_add_f32 {vr(U, 2)}, {vr(U, 2)}, {vr(U + 4, 2)}
v_min_u32 v{U}, -2, v{U}
v_min_u32 v{U + 1}, -2, v{U + 1}
buffer_store_dwordx2 {vr(U, 2)}, v{S}, {sr(sWS)}, s{sT0} offen sc1''')
            a(cond_end())
            a(f'{skip}:')
        def after():
            self.c_ok = True
            stats_out()
        self.ag(self.ld(self.o('n_f', 3)))
        nA = self.o('nA', 13)
        need = max(i for i in range(nA) if i % 7 >= 2) + 1
        gf = min(self.o('gf', 4), need - self.g_done)
        self.g_proc(gf, self.o('gf_n', 2), after)
        a(waitvm('hst'))
        a(self.stamp('hack'))
        a(self.arrive(sCHP, CNT + 16384))
        self.ag(self.ld(self.o('n_g', 6)))
        self.g_proc(need - self.g_done, 3)
        self.ag(self.ld(99))
        if self.o('w2pos', 0) == 3:
            a(f'buffer_load_dword v0, v0, {sr(sWU)}, 0 offen')
        assert self.issued == len(self.seq)
        a(f'''s_lshl_b32 s{sT0}, s{sKVGRP}, 16
s_and_b32 s{sT1}, s{sMH}, 0x1000
s_add_u32 s{sT0}, s{sT0}, s{sT1}
s_add_u32 s{sT0}, s{sT0}, {HBUF}
v_add_u32 v{vA5}, s{sT0}, v{vL16}
s_lshl_b32 s{sRG}, s{sRG}, 11
s_and_b32 s{sT1}, s{sMH}, 0x8000
v_add_u32 v{vA1}, s{sT1}, v{vL16}
v_add_u32 v{vA2}, 0x10000, v{vA1}
s_lshl_b32 s4, s{sKVGRP}, 12
s_add_u32 s4, s4, {STATS}
s_waitcnt lgkmcnt(0)''')
        a(self.poll_issue(sCHC, CNT + 16384))
        a('s_barrier')
        a(self.stamp('gdone'))
        a(self.poll_check(sCHC, CNT + 16384, 16))
        a(self.stamp('hflag'))

    UNITS = [(0, 0), (1, 0), (2, 0), (0, 1), (1, 1), (2, 1)]

    def epilogue(self, n):
        acc = (ACC0, ACC1)[n & 1]
        p, hh = self.UNITS[n]
        o = OUTR + 4 * (n & 1)
        g = []
        for i0 in range(0, 8, 2):
            for i in (i0, i0 + 1):
                g.append(I(f'v_mul_f32 v{acc + 8 + i}, v{acc + i}, v{acc + 8 + i}'))
                g.append(I(f'v_mul_f32 v{acc + i}, v{acc + i}, v{vC1 + hh}'))
            for i in (i0, i0 + 1):
                g.append(I(f'v_exp_f32 v{acc + i}, v{acc + i}'))
            for i in (i0, i0 + 1):
                g.append(I(f'v_fma_f32 v{acc + i}, v{acc + i}, v{vQ + hh}, v{vQ + hh}'))
            for i in (i0, i0 + 1):
                g.append(I(f'v_rcp_f32 v{acc + i}, v{acc + i}'))
            for i in (i0, i0 + 1):
                g.append(I(f'v_mul_f32 v{acc + i}, v{acc + i}, v{acc + 8 + i}'))
            g.append(I(f'v_cvt_pk_bf16_f32 v{o + (i0 >> 1)}, v{acc + i0}, v{acc + i0 + 1}'))
        va, so = (vL16, f's{5 + p}') if p < 2 else (vZ4, '0')
        g.append(I(f'buffer_store_dwordx4 {vr(o, 4)}, v{va}, {sr(sWS)}, {so} offen offset:{hh * 1024} sc1', f'ast{n}'))
        return g

    @staticmethod
    def wd_slot(n):
        n %= 24
        return L_WD + n * 4096 if n < 8 else (n - 8) * 4096

    def wd_d(self, n):
        p, mm = (n >> 4, n & 15)
        return I(f's_add_u32 m0, s{sM0W}, {self.wd_slot(n)}\ns_mov_b32 s{sT0}, {(U0[mm] + p) * 32768}') + \
            I(f'buffer_load_dwordx4 v{vA0}, {sr(sWD)}, s{sT0} offen lds', f'wd{n}')

    def wd_r(self, n0, n1, tag):
        g = []
        for n in range(n0, n1):
            adr = self.wd_slot(n)
            base, off = (vA7, adr - L_WD) if adr >= L_WD else (vA3, adr)
            g += [I(f'ds_read_b64_tr_b16 {ar(4 * n + 2 * h, 2)}, v{base} offset:{off + h * 512}', tag) for h in range(2)]
        return g

    def p3(self):
        a = self.a
        ST = ACC1

        def hd(q, i):
            g = [I(f'buffer_load_dwordx4 v{vA5}, {sr(sWS)}, s{sDM} offen offset:{k * 1024} sc1 lds', f'h{q}{i}') for k in range(4)]
            g[0] = I(f's_add_u32 m0, s{sMH}, {q * 65536 + i * 8192}\ns_xor_b32 s{sDM}, s{sRG}, {q * 32768 + i * 8192}') + g[0]
            return g
        h0 = [g for i in range(4) for g in hd(0, i)]
        h1 = [g for i in range(4) for g in hd(1, i)]
        nh = self.o('h_d', 8)
        self.ag(h0[:nh])
        h0 = h0[nh:]
        self.g_proc(16, 2, None, h0)
        self.ag(h0[:self.o('h_d2', 2)])
        h0 = h0[self.o('h_d2', 2):]
        a('s_waitcnt lgkmcnt(0)')
        self.ag(self.g_cs(15))
        a(f'''v_lshrrev_b32 v{vTMP}, 3, v{vLANE}
v_and_b32 v{vTMP2}, 2, v{vTMP}
s_and_b32 s{sT0}, s{sW}, 1
s_lshl_b32 s{sT1}, s{sT0}, 2
v_or_b32 v{vTMP2}, s{sT1}, v{vTMP2}
v_and_b32 v{vA0}, 7, v{vLANE}
v_xor_b32 v{vA0}, v{vA0}, v{vTMP2}
v_lshlrev_b32 v{vA0}, 4, v{vA0}
v_lshl_add_u32 v{vA0}, v{vTMP}, 10, v{vA0}
s_lshl_b32 s{sT1}, s{sW}, 13
s_lshl_b32 s{sT2}, s{sJ}, 7
s_add_u32 s{sT1}, s{sT1}, s{sT2}
v_add_u32 v{vA0}, s{sT1}, v{vA0}
s_mul_i32 s{sT2}, s{sKVGRP}, {172 * 1024}
s_lshl1_add_u32 s{sT0}, s{sMM}, s{sT0}
s_lshl_b32 s{sT0}, s{sT0}, 11
s_add_u32 s{sT0}, s{sT0}, s{sT2}
s_add_u32 s5, s{sT0}, {ACT}
s_add_u32 s6, s5, 65536
s_add_u32 s{sT0}, s5, 131072
s_cmp_lt_u32 s{sMM}, 11
s_cselect_b32 s{sT0}, s{sT0}, {OOB}
v_add_u32 v{vZ4}, s{sT0}, v{vL16}
s_mul_i32 s7, s{sG}, {172 * 1024}
s_add_u32 s7, s7, s{sM0W2}
s_add_u32 s7, s7, {ACT}
v_add_u32 v{vA3}, 0xfffe0000, v{vA7}
v_cmp_gt_u32 vcc, 32, v{vLANE}''')
        for p in range(3):
            e = EXT + 4 * p
            a(f'''v_cvt_pk_bf16_f32 v{e + 1}, v{e}, v{e}
v_lshlrev_b32 v{e + 1}, 16, v{e + 1}
v_sub_f32 v{e + 1}, v{e}, v{e + 1}
v_cvt_pk_bf16_f32 v{e}, v{e}, v{e + 1}
v_cndmask_b32 v{e}, 0, v{e}, vcc
v_mov_b32 v{e + 1}, 0
v_mov_b32 v{e + 2}, 0
v_mov_b32 v{e + 3}, 0''')

        def stl():
            return [I(f'buffer_load_dwordx4 {vr(ST + 4 * i, 4)}, v{vL16}, {sr(sWS)}, s4 offen offset:{i * 1024} sc1') for i in range(4)]

        def stmax():
            return each(f'v_max_u32 v{vTMP}, v{ST}, v{ST + 1}') + [I(f'v_max3_u32 v{vTMP}, v{vTMP}, v{ST + 2 * i}, v{ST + 2 * i + 1}') for i in range(1, 8)]
        ok, again = self.label('L_ok'), self.label('L_again')
        chk = I(f'v_cmp_eq_u32 vcc, -1, v{vTMP}\ns_cbranch_vccz {ok}') + cond_begin() + I(f'{again}:')
        for g in stl():
            chk += g
        chk += I(self.timeout()) + I('s_waitcnt vmcnt(0)')
        for g in stmax():
            chk += g
        chk += I(f'v_cmp_eq_u32 vcc, -1, v{vTMP}\ns_cbranch_vccnz {again}') + cond_end() + I(f'{ok}:')
        st1 = stmax() + [('blk', chk)]
        for r in range(4):
            st1 += each(f'v_add_f32 v{ST + r}, v{ST + r}, v{ST + 4 + r}\nv_add_f32 v{ST + 8 + r}, v{ST + 8 + r}, v{ST + 12 + r}')
        for r in range(4):
            st1 += each(f'v_add_f32 v{ST + r}, v{ST + r}, v{ST + 8 + r}')
        for r in range(4):
            st1 += each(f'v_mov_b32 v{ST + 4 + r}, v{ST + r}')
        for r in range(4):
            st1 += each(f'v_permlane32_swap_b32 v{ST + r}, v{ST + 4 + r}')
        for hh in range(2):
            st1 += each(f'v_add_f32 v{vC1 + hh}, v{ST + 2 * hh}, v{ST + 4 + 2 * hh}\nv_add_f32 v{vQ + hh}, v{ST + 2 * hh + 1}, v{ST + 5 + 2 * hh}')

        def fin(hh):
            c, q, b = vC1 + hh, vQ + hh, BEXT + 4 * hh
            return each(f'''v_mul_f32 v{c}, 0x{f2u(-1 / 512):x}, v{c}
v_mul_f32 v{q}, 0x{f2u(1 / 512):x}, v{q}
v_cvt_pk_bf16_f32 v{b}, v{c}, v{c}
v_fma_f32 v{q}, -v{c}, v{c}, v{q}
v_mov_b32 v{b + 1}, v{b}
v_max_f32 v{q}, 0, v{q}
v_mov_b32 v{b + 2}, v{b}
v_add_f32 v{q}, 0x{f2u(1e-5):x}, v{q}
v_mov_b32 v{b + 3}, v{b}
v_rsq_f32 v{c}, v{q}
s_nop 0
v_mul_f32 v{c}, 0x{f2u(-LOG2E):x}, v{c}''')

        LA = 6
        NU = 6

        def rd(q):
            n, s = divmod(q, 32)
            return I(f'ds_read_b128 {vr(BR + 4 * (q & 7), 4)}, v{vA1 + self.UNITS[n][1]} offset:{s * 1024}', f'b{q}')

        presync = {8 * i: waitvm(f'h0{i}') + I('s_barrier') for i in range(4)}
        presync[0] += self.stamp('h0')
        presync[96] = waitvm('h13') + I('s_barrier')
        mem, val, ctl = {}, {}, {}

        def put(d, g0, groups, per):
            k, gap, acc = 0, g0, 0.0
            while k < len(groups):
                acc += per
                while acc >= 1 - 1e-9 and k < len(groups):
                    d.setdefault(gap, []).append(groups[k])
                    k += 1
                    acc -= 1
                gap += 1
            return gap
        rate = self.o('rate', 34) / 100.0
        n1 = self.o('h1_fast', 6)
        g = put(mem, 0, h0 + stl() + h1[:n1], self.o('rate0', 50) / 100.0)
        g = put(mem, g, h1[n1:] + [self.wd_d(n) for n in range(8)], rate)
        assert g <= 99
        put(val, self.o('st_g', 19), st1 + fin(0), 3.6)
        put(val, 33 + 22, fin(1), 3)
        er = self.o('ep_rate', 36) / 10.0
        for n in range(1, NU):
            put(val, 33 * n + 3, self.epilogue(n - 1), er)
        ga = self.o('ga3', 12)
        ctl.setdefault(33 * 5 + ga, []).append(waitvm('ast3') + self.arrive(sCAP, CNT + 2 * 16384))
        val.setdefault(33 * 3, []).append(I(f'v_add_u32 v{vA5}, s7, v{vL16}'))
        ctl.setdefault(98, []).append(I('s_barrier'))
        rate2 = self.o('rate2', 38) / 100.0
        pos = {}
        gap, acc = 98, 1.0
        for n in range(8, 43):
            while acc < 1 - 1e-9:
                acc += rate2
                gap += 1
            acc -= 1
            if n == 24:
                gap = max(gap, 145)
            if n == 32:
                gap = max(gap, 158)
            if n == 40:
                gap = max(gap, 171)
            pos[n] = gap
        self.wd_late = [n for n in range(8, 43) if pos[n] > 197]
        assert not self.wd_late or self.wd_late[0] >= 32
        rds = {}
        for k, (gap, n0, n1) in enumerate(((132, 0, 8), (145, 8, 16), (158, 16, 24), (171, 24, 24), (self.o('wr3', 184), 24, 32))):
            assert n1 <= 8 or pos[n1 - 1] < gap
            ctl.setdefault(gap, []).append(waitlg(f'wr{k - 1}') + waitvm(f'wd{n1 - 1}') + I('s_barrier'))
            put(rds, gap, self.wd_r(n0, n1, f'wr{k}'), 16 / 9.0)
        for gap in sorted(rds):
            mem.setdefault(gap, []).extend(rds[gap])
        for n in range(8, 43):
            if pos[n] <= 197:
                mem.setdefault(pos[n], []).append(self.wd_d(n))
        ctl.setdefault(197 - self.o('gp3', 4), []).append(self.poll_issue(sCX, CNT + 2 * 16384))

        for q in range(LA):
            a(presync.get(q, []))
            a(rd(q))
        carry = []
        for n in range(NU):
            acc = vr((ACC0, ACC1)[n & 1], 16)
            p, hh = self.UNITS[n]
            for s in range(33):
                q, gap = 32 * n + s, 33 * n + s
                if s < 32:
                    if s % 2 == 0:
                        a(waitlg(f'b{q + 1}'))
                    a(f'v_mfma_f32_32x32x16_bf16 {acc}, {treg(p, s)}, {vr(BR + 4 * (q & 7), 4)}, {acc if s else 0}')
                    self.ag(ctl.pop(gap, []))
                    if q + LA < 32 * NU:
                        a(presync.get(q + LA, []))
                        a(rd(q + LA))
                else:
                    a(f'v_mfma_f32_32x32x16_bf16 {acc}, {vr(EXT + 4 * p, 4)}, {vr(BEXT + 4 * hh, 4)}, {acc}')
                    self.ag(ctl.pop(gap, []))
                self.ag(mem.pop(gap, []))
                vs = carry + val.pop(gap, [])
                carry = []
                for k, g in enumerate(vs):
                    if isinstance(g, tuple):
                        a(g[1])
                    elif gkind(g) == 'mem' and k > 0:
                        carry = vs[k:]
                        break
                    else:
                        a(g)
            if n < 5:
                a(self.stamp(f'u{n}'))
        assert not mem and not val and not ctl and not carry, (mem.keys(), val.keys(), ctl.keys())
        a('s_barrier')
        a(self.stamp('p3mm'))
        ep = self.epilogue(5)
        dm = [self.wd_d(n) for n in self.wd_late]
        a(interleave(ep, dm, start=0, every=len(ep) / (len(dm) + 0.5)))
        a(waitvm('ast4') + self.arrive(sCAP, CNT + 3 * 16384) if self.o('a4pos', 1) == 0 else [])
        a(self.stamp('ep5'))

    def p4(self):
        a = self.a
        a(self.poll_check(sCX, CNT + 2 * 16384, 8))
        a(waitvm('ast4') + self.arrive(sCAP, CNT + 3 * 16384) if self.o('a4pos', 1) == 1 else [])
        d1 = [g for u in range(8) for g in self.blk_dma(65536, u, f'a1{u >> 1}', 0, False)]
        d2 = [g for u in range(8) for g in self.blk_dma(0, u, f'a2{u >> 1}', 65536, False)]
        nd = self.o('a1_d', 8)
        self.ag(d1[:nd])
        a(waitvm('wd42') + I('s_barrier'))
        a(interleave(self.wd_r(32, 43, 'wr9'), d1[nd:nd + 3], start=2, every=7))
        a(f'v_add_u32 v{vA1}, 0x20000, v{vNEG}')
        a(waitvm('ast5') + waitlg('wr9') + self.arrive(sCAP, CNT + 4 * 16384))
        a(self.poll_issue(sCX, CNT + 3 * 16384))
        self.ag(d1[nd + 3:])
        side = {}
        k = self.o('p4_k', 0)
        side.setdefault(k, []).append(self.poll_check(sCX, CNT + 3 * 16384, 8) + self.stamp('c2'))
        sp2 = self.o('p4_sp2', 14)
        for i, g in enumerate(d2):
            side.setdefault(k + i * sp2 // 16, []).append(g)
        steps = [(vA6, s * 4096) for s in range(16)] + [(vNEG, s * 4096) for s in range(16)]
        steps += [(vA1, s * 4096) for s in range(8)] + [(vA6, s * 4096) for s in range(3)]
        sync = {}
        for c in range(4):
            sync[4 * c] = waitvm(f'a1{c}') + I('s_barrier') + (self.stamp('a1') if c == 0 else [])
            sync[16 + 4 * c] = waitvm(f'a2{c}') + I('s_barrier') + (self.stamp('s16') if c == 0 else [])
            assert k + (4 * c + 3) * sp2 // 16 < 13 + 4 * c
        for c in range(3):
            sync[32 + 4 * c] = waitvm(f'a3{c}') + I('s_barrier') + (self.stamp('a30') if c == 0 else [])
        k3 = max(self.o('p4_k3', 15), k + sp2)
        side.setdefault(k3 - self.o('p4_kp', 7), []).insert(0, self.poll_issue(sCX, CNT + 4 * 16384))
        side.setdefault(k3, []).append(self.stamp('k3') + self.poll_check(sCX, CNT + 4 * 16384, 8) + self.stamp('c3'))
        d3 = [g for u in range(5) for g in self.blk_dma(131072 if u < 4 else 32768, u, f'a3{(0, 0, 1, 1, 2)[u]}', 131072, False)]
        done = self.label('L_d3')
        last = I(f's_cmp_ge_u32 s{sW}, 2\ns_cbranch_scc1 {done}') + cond_begin()
        for g in self.blk_dma(32768, 5, 'a32', 131072, False):
            last += g
        d3.append(last + cond_end() + I(f'{done}:'))
        sp3 = self.o('p4_sp3', 10)
        for i, g in enumerate(d3):
            side.setdefault(k3 + i * sp3 // len(d3), []).append(g)
        assert k3 + sp3 <= 29
        side.setdefault(31, []).append(self.stamp('p4b'))
        side.setdefault(40, []).extend(each(f'''v_and_b32 v{vTMP}, 31, v{vLANE}
v_lshlrev_b32 v{vTMP}, 10, v{vTMP}
v_lshrrev_b32 v{vTMP2}, 5, v{vLANE}
v_lshl_add_u32 v{vA4}, v{vTMP2}, 4, v{vTMP}'''))
        side.setdefault(41, []).extend(each(f'''s_lshl_b32 s{sT0}, s{sG}, 16
s_lshl_b32 s{sT1}, s{sCT}, 5
s_add_u32 s4, s{sT0}, s{sT1}
s_add_u32 s5, s4, 32768'''))
        self.gemm16(steps, lambda n: ar(4 * n, 4), sync, side, 0)
        a(self.stamp('p4c'))
        X = 96
        for hh in range(2):
            for t in range(2):
                for p in range(2):
                    h = HACC + 4 * (2 * hh + t) + 2 * p
                    a(f'v_cvt_pk_bf16_f32 v{X + 4 * hh + 2 * t + p}, v{h}, v{h + 1}')
            a(f'v_permlane16_swap_b32 v{X + 4 * hh}, v{X + 4 * hh + 2}\nv_permlane16_swap_b32 v{X + 4 * hh + 1}, v{X + 4 * hh + 3}')
            a(f'buffer_store_dwordx4 {vr(X + 4 * hh, 4)}, v{vA4}, {sr(sOUT)}, s{4 + hh} offen')
        if self.prof:
            a('s_waitcnt vmcnt(0)')
            a(self.stamp('end'))
            a('s_memrealtime s[20:21]\ns_waitcnt lgkmcnt(0)')
            a(f's_lshl2_add_u32 s{sT0}, s2, s{sW}\ns_lshl_b32 s{sT0}, s{sT0}, 7\ns_add_u32 s{sT0}, s{sT0}, {PROF}')
            a(f'v_mov_b32 v{vTMP2}, 0\ns_mov_b64 exec, 1')
            vals = ['s0', 's20'] + [f's{STAMP0 + 2 * i}' for i in range(self.nstamp)]
            for i, v in enumerate(vals):
                a(f'v_mov_b32 v{vTMP}, {v}\nbuffer_store_dword v{vTMP}, v{vTMP2}, {sr(sWS)}, s{sT0} offen offset:{4 * i}')

    def build(self):
        self.prologue()
        self.p1()
        self.attn()
        self.p2()
        self.p3()
        self.p4()
        self.a('L_end:\ns_endpgm')
        items = resolve_waits(self.items, True)
        items = pad_hazards(items, True)
        head = open('sequential_preLN__linear_attn_block__swiglu_ffn__prompt.s.ref').read().split('; Override launch')[0]
        txt = head + '; @launch grid=(256,1,1) block=(256,1,1) lds=163840\n'
        txt += f'.amdgcn_target "amdgcn-amd-amdhsa--gfx950"\n.text\n.globl {NAME}\n.p2align 8\n.type {NAME},@function\n{NAME}:\n'
        txt += render(items) + '\n'
        txt += f'''.section .rodata,"a"
.p2align 6
.amdhsa_kernel {NAME}
  .amdhsa_next_free_vgpr 512
  .amdhsa_next_free_sgpr 102
  .amdhsa_accum_offset 256
  .amdhsa_group_segment_fixed_size 0
  .amdhsa_kernarg_size 80
  .amdhsa_user_sgpr_count 2
  .amdhsa_user_sgpr_kernarg_segment_ptr 1
  .amdhsa_system_sgpr_workgroup_id_x 1
.end_amdhsa_kernel
'''
        return txt


if __name__ == '__main__':
    out = sys.argv[1]
    prof = len(sys.argv) > 2 and sys.argv[2] == 'prof'
    opt = {}
    for kv in sys.argv[3:]:
        k, v = kv.split('=')
        opt[k] = int(v)
    g = Gen(prof, opt)
    open(out, 'w').write(g.build())
    if prof:
        open(out + '.stamps', 'w').write(' '.join(g.stamp_names))
```
